```python
import torch

def _softmax(x, axis=-1):
    return torch.softmax(x, dim=axis)

def _gelu(x):
    return torch.nn.functional.gelu(x, approximate='tanh')

def _silu(x):
    return torch.nn.functional.silu(x)

def _sigmoid(x):
    return torch.sigmoid(x)

def _layernorm(x, axis=-1, eps=1e-05):
    m = x.mean(dim=axis, keepdim=True)
    v = x.var(dim=axis, keepdim=True, unbiased=False)
    return (x - m) / torch.sqrt(v + eps)

def _scatter_add(tgt, idx, src, axis=0):
    return tgt.clone().index_add_(axis, idx, src)

def _segment_sum(src, seg, n):
    out = torch.zeros((n,) + src.shape[1:], dtype=src.dtype)
    return out.index_add_(0, seg, src)

def _pad(x, pw):
    flat = tuple((v for pair in reversed(pw) for v in pair))
    return torch.nn.functional.pad(x, flat)
kernel_name = 'standalone__conformer_family_zipformer__speech'

def setup_inputs():

    _w = lambda a: (lambda t: t.to(torch.bfloat16) if t.is_floating_point() else t)(torch.as_tensor(a))
    B, T, D, K, H = (2, 4000, 256, 31, 4)
    sc = 0.1
    return {'x': _w((lambda *s: torch.randn(*s, dtype=torch.bfloat16) * 0.8)(B, T, D)), 'w_ff1a': _w((lambda *s: torch.randn(*s, dtype=torch.bfloat16) * 0.8)(D, 4 * D) * sc), 'w_ff1b': _w((lambda *s: torch.randn(*s, dtype=torch.bfloat16) * 0.8)(4 * D, D) * sc), 'w_qkv': _w((lambda *s: torch.randn(*s, dtype=torch.bfloat16) * 0.8)(D, 3 * D) * sc), 'w_o': _w((lambda *s: torch.randn(*s, dtype=torch.bfloat16) * 1.6)(D, D) * sc), 'w_pw1': _w((lambda *s: torch.randn(*s, dtype=torch.bfloat16) * 1.6)(D, 2 * D) * sc), 'dw': _w((lambda *s: torch.randn(*s, dtype=torch.bfloat16) * 0.4)(K, D)), 'w_pw2': _w((lambda *s: torch.randn(*s, dtype=torch.bfloat16) * 0.4)(D, D) * sc), 'w_ff2a': _w((lambda *s: torch.randn(*s, dtype=torch.bfloat16) * 0.8)(D, 4 * D) * sc), 'w_ff2b': _w((lambda *s: torch.randn(*s, dtype=torch.bfloat16) * 0.8)(4 * D, D) * sc)}

def reference(x, w_ff1a, w_ff1b, w_qkv, w_o, w_pw1, dw, w_pw2, w_ff2a, w_ff2b):
    B, T, D = x.shape
    K = dw.shape[0]
    H = 4
    Dh = D // H
    h = _layernorm(x, axis=-1)
    h = _silu(h @ w_ff1a) @ w_ff1b
    x = x + 0.5 * h
    h = _layernorm(x, axis=-1)
    qkv = h @ w_qkv
    q = (lambda x, *d: x.permute(*d))(qkv[..., :D].reshape(B, T, H, Dh), 0, 2, 1, 3)
    k = (lambda x, *d: x.permute(*d))(qkv[..., D:2 * D].reshape(B, T, H, Dh), 0, 2, 1, 3)
    v = (lambda x, *d: x.permute(*d))(qkv[..., 2 * D:].reshape(B, T, H, Dh), 0, 2, 1, 3)
    scale = Dh ** (-0.5)
    scores = torch.einsum('bhqd,bhkd->bhqk', q, k) * scale
    p = _softmax(scores, axis=-1)
    att = torch.einsum('bhqk,bhkd->bhqd', p, v)
    att = (lambda x, *d: x.permute(*d))(att, 0, 2, 1, 3).reshape(B, T, D)
    x = x + att @ w_o
    h = _layernorm(x, axis=-1)
    h = h @ w_pw1
    a, b = (h[..., :D].clone(), h[..., D:].clone())
    h = a * _sigmoid(b)
    pad = K // 2
    hp = _pad(h, ((0, 0), (pad, pad), (0, 0)))
    c = torch.zeros_like(h)
    for i in range(K):
        c = c + hp[:, i:i + T, :] * dw[i][None, None, :]
    x = x + _silu(c) @ w_pw2
    h = _layernorm(x, axis=-1)
    h = _silu(h @ w_ff2a) @ w_ff2b
    x = x + 0.5 * h
    return _layernorm(x, axis=-1)
```

```python
class Asm:
    def __init__(self):
        self.lines = []
    def __call__(self, s):
        for l in s.split("\n"):
            l = l.strip()
            if l:
                self.lines.append(l if l.endswith(":") or l.startswith(".") or l.startswith(";") else "    " + l)
    def ext(self, lst):
        for s in lst:
            self(s)
    def text(self):
        return "\n".join(self.lines) + "\n"

def vr(b, n=1, t="v"):
    return f"{t}{b}" if n == 1 else f"{t}[{b}:{b+n-1}]"
def ar(b, n=1):
    return vr(b, n, "a")
def sr(b, n=1):
    return vr(b, n, "s")

class R:
    def __init__(self, t, b):
        self.t, self.b = t, b
    def __call__(self, off=0, n=1):
        return vr(self.b + off, n, self.t)
    def at(self, off):
        return R(self.t, self.b + off)

def srd(a, d, base, nbytes):
    a(f"s_mov_b32 s{d}, s{base}")
    a(f"s_mov_b32 s{d+1}, s{base+1}")
    a(f"s_mov_b32 s{d+2}, {nbytes}")
    a(f"s_mov_b32 s{d+3}, 0x20000")

def srd_off(a, d, base, off, nbytes):
    a(f"s_add_u32 s{d}, s{base}, {off}")
    a(f"s_addc_u32 s{d+1}, s{base+1}, 0")
    a(f"s_mov_b32 s{d+2}, {nbytes}")
    a(f"s_mov_b32 s{d+3}, 0x20000")

def kernel_head(a, name):
    a(".text")
    a(f".globl {name}")
    a(".p2align 8")
    a(f".type {name},@function")
    a(f"{name}:")

def kernel_desc(a, name, nvgpr, accum, nsgpr=102):
    a('.section .rodata,"a"')
    a(".p2align 6")
    a(f".amdhsa_kernel {name}")
    a(f"  .amdhsa_next_free_vgpr {nvgpr}")
    a(f"  .amdhsa_next_free_sgpr {nsgpr}")
    a(f"  .amdhsa_accum_offset {accum}")
    a("  .amdhsa_group_segment_fixed_size 0")
    a("  .amdhsa_kernarg_size 104")
    a("  .amdhsa_user_sgpr_count 2")
    a("  .amdhsa_user_sgpr_kernarg_segment_ptr 1")
    a("  .amdhsa_system_sgpr_workgroup_id_x 1")
    a("  .amdhsa_float_denorm_mode_32 3")
    a(".end_amdhsa_kernel")

def interleave(main, fill, pattern=None):
    out = []
    n = len(main)
    k = 0
    for i, m in enumerate(main):
        out.append(m)
        tgt = (len(fill) * (i + 1)) // n if pattern is None else sum(pattern[:i+1])
        while k < tgt and k < len(fill):
            out.append(fill[k]); k += 1
    out += fill[k:]
    return out
```

```python
from asmlib import *
from layout import *
from ka import tail_timing

def gen_attn(a, name, timing=False, dbg="", store_fl="sc1"):
    NB = 2
    ldfl = (" nt" if "ldnt" in dbg else "") + (" sc1" if "ldsc1" in dbg else "") + (" sc0" if "ldsc0" in dbg else "")
    O = R("a", 0)
    Q = R("a", 128)
    KB = [R("a", 192), R("a", 208)]
    VB = [R("a", 224), R("a", 240)]
    S = [R("v", 16 + 16*i) for i in range(4)]
    P = [R("v", 80), R("v", 88)]
    NM = R("v", 96)
    L = R("v", 160)
    SEL = R("v", 176)
    T = R("v", 184)
    vl16 = "v1"
    vko = "v2"
    sQ, sAT = 8, 16
    sKV = 12
    sW, sBH, sQB = 20, 21, 22
    sKo, sBeg, sEnd, sCnt, sN, sPass, sStart = 23, 25, 26, 27, 28, 29, 30

    def stamp(k):
        if timing:
            a(f"s_memtime s[{64+2*k}:{65+2*k}]")

    kernel_head(a, name)
    a("s_cmp_ge_u32 s2, 256")
    a(f"s_cbranch_scc1 {name}_end")
    a(f"s_load_dwordx2 s[4:5], s[0:1], {KA_WS}")
    if timing:
        a("s_memrealtime s[40:41]")
        stamp(0)
    a("v_lshrrev_b32 v2, 6, v0")
    a("v_and_b32 v1, 63, v0")
    a(f"v_readfirstlane_b32 s{sW}, v2")
    a("v_lshlrev_b32 v1, 4, v1")
    a(f"s_and_b32 s{sBH}, s2, 7")
    a(f"s_lshr_b32 s{sQB}, s2, 3")
    a(f"s_mul_i32 s31, s{sBH}, {Q_BH}")
    a(f"s_mul_i32 s32, s{sBH}, {KV_BH}")
    a(f"s_add_u32 s32, s32, {WS_KV}")
    a(f"s_cmp_eq_u32 s{sW}, 0")
    a(f"s_cselect_b32 s{sN}, 32, 31")
    a(f"s_lshl_b32 s{sBeg}, s{sW}, 13")
    a(f"s_add_u32 s{sBeg}, s{sBeg}, 4096")
    a(f"s_lshl_b32 s{sEnd}, s{sN}, 15")
    a(f"s_add_u32 s{sEnd}, s{sEnd}, s{sBeg}")
    a(f"s_lshl_b32 s{sStart}, s{sQB}, 15")
    a(f"s_add_u32 s{sStart}, s{sStart}, s{sBeg}")
    a(f"s_cmp_ge_u32 s{sStart}, s{sEnd}")
    a(f"s_cselect_b32 s{sStart}, s{sBeg}, s{sStart}")
    a(f"s_lshl_b32 s33, s{sQB}, 14")
    a(f"s_sub_u32 s{sN}, s{sN}, 1")
    a(f"s_mov_b32 s{sPass}, 0")
    a("s_waitcnt lgkmcnt(0)")
    a(f"s_add_u32 s{sQ}, s4, s31"); a(f"s_addc_u32 s{sQ+1}, s5, 0"); a(f"s_mov_b32 s{sQ+2}, {Q_BH}"); a(f"s_mov_b32 s{sQ+3}, 0x20000")
    a(f"s_add_u32 s{sKV}, s4, s32"); a(f"s_addc_u32 s{sKV+1}, s5, 0")

    def adv():
        return [f"s_add_u32 s{sKo}, s{sKo}, 32768", f"s_cmp_ge_u32 s{sKo}, s{sEnd}",
                f"s_cselect_b32 s{sKo}, s{sBeg}, s{sKo}", f"v_add_u32 {vko}, s{sKo}, {vl16}"]
    def loadK(b):
        return [f"global_load_dwordx4 {KB[b](4*f,4)}, {vko}, s[{sKV}:{sKV+1}] offset:{1024*f-4096}{ldfl}" for f in range(4)]
    def loadV(b):
        return [f"global_load_dwordx4 {VB[b](4*f,4)}, {vko}, s[{sKV}:{sKV+1}] offset:{1024*f}{ldfl}" for f in range(4)]
    def qk(i, kb, dst, c):
        out = []
        for ds in range(4):
            cc = c if ds == 0 else dst(0, 16)
            out.append(f"v_mfma_f32_32x32x16_bf16 {dst(0,16)}, {KB[kb](4*ds,4)}, {Q(16*i+4*ds,4)}, {cc}")
        return out
    def pv(i, vb, p):
        out = []
        for ks in range(2):
            for dt in range(2):
                o = O(32*i+16*dt, 16)
                if "swappv" in dbg:
                    out.append(f"v_mfma_f32_32x32x16_bf16 {o}, {p(4*ks,4)}, {VB[vb](4*(2*dt+ks),4)}, {o}")
                else:
                    out.append(f"v_mfma_f32_32x32x16_bf16 {o}, {VB[vb](4*(2*dt+ks),4)}, {p(4*ks,4)}, {o}")
        return out
    def summ(i, p):
        return f"v_smfmac_f32_16x16x64_bf16 {L(4*i,4)}, {SEL(0,4)}, {p(0,8)}, {SEL(4)}"

    def start_loads():
        a(f"s_mov_b32 s{sKo}, s{sStart}")
        a(f"v_add_u32 {vko}, s{sKo}, {vl16}")
        a.ext(loadK(0))
    start_loads()
    for i in range(4):
        for ds in range(4):
            a(f"buffer_load_dwordx4 {Q(16*i+4*ds,4)}, {vl16}, s[{sQ}:{sQ+3}], s33 offen offset:{1024*ds}")
        if i < 3:
            a("s_add_u32 s33, s33, 4096")
    def rest_loads():
        a.ext(loadV(0)); a.ext(adv()); a.ext(loadK(1))
    rest_loads()
    srd_off(a, sAT, 4, WS_ATT, ATT_SZ)
    a("v_lshrrev_b32 v3, 4, v1")
    a("v_and_b32 v4, 6, v3")
    a("v_mov_b32 v5, 0x3f803f80")
    a("v_cmp_eq_u32 vcc, 0, v4")
    a("s_nop 1")
    for r in range(2):
        a(f"v_cndmask_b32 {SEL(r)}, 0, v5, vcc")
    a("v_cmp_eq_u32 vcc, 4, v4")
    a("s_nop 1")
    for r in range(2, 4):
        a(f"v_cndmask_b32 {SEL(r)}, 0, v5, vcc")
    a("v_and_b32 v4, 1, v3")
    a("v_cmp_eq_u32 vcc, 0, v4")
    a("v_mov_b32 v5, 0x44444444")
    a("v_mov_b32 v6, 0xeeeeeeee")
    a(f"v_cndmask_b32 {SEL(4)}, v6, v5, vcc")
    def zero_state():
        for r in range(128):
            a(f"v_accvgpr_write_b32 {O(r)}, 0")
        for r in range(16):
            a(f"v_accvgpr_write_b32 {VB[1](r)}, 0")
        for r in range(8):
            a(f"v_mov_b32 {P[1](r)}, 0")
        for r in range(16):
            a(f"v_mov_b32 {L(r)}, 0")
        a(f"v_mov_b32 {S[3](14)}, 0")
        a(f"v_mov_b32 {S[3](15)}, 0")
        a(f"s_mov_b32 s{sCnt}, s{sN}")
    zero_state()

    stamp(1)
    def red(i, src):
        t = T(i)
        o = [f"v_max3_f32 {t}, {src(0)}, {src(1)}, {src(2)}"]
        for j in range(3, 15, 2):
            o.append(f"v_max3_f32 {t}, {t}, {src(j)}, {src(j+1)}")
        o.append(f"v_max_f32 {t}, {t}, {src(15)}")
        return o
    def fin(i):
        o = [f"v_mov_b32 {T(4+i)}, {T(i)}", "s_nop 1", f"v_permlane32_swap_b32 {T(i)}, {T(4+i)}",
             f"v_max_f32 {T(i)}, {T(i)}, {T(4+i)}"]
        o += [f"v_sub_f32 {NM(16*i+r)}, 0, {T(i)}" for r in range(16)]
        return o
    for i in range(4):
        a(f"s_waitcnt vmcnt({8 + 4*(3-i)})")
        m = qk(i, 0, NM.at(16*i), "0")
        fill = []
        if i >= 2:
            fill = red(i-2, NM.at(16*(i-2))) + fin(i-2)
        a.ext(interleave(m, fill))
    stamp(2)
    a.ext(interleave(qk(0, 0, S[0], NM(0, 16)), red(2, NM.at(32)) + fin(2)))
    a.ext(red(3, NM.at(48)) + fin(3))
    a(f"s_branch {name}_loop")

    a(f"{name}_pass:")
    start_loads(); rest_loads(); zero_state()
    a("s_waitcnt vmcnt(8)")
    a.ext(qk(0, 0, S[0], NM(0, 16)))
    a("s_nop 7"); a("s_nop 3")

    a(".p2align 6")
    a(f"{name}_loop:")
    if timing:
        pass
    for tb in range(NB):
        for i in range(4):
            kb_next = tb if i < 3 else (tb + 1) % NB
            vb_prev = tb if i > 0 else (tb - 1) % NB
            ip, inx = (i - 1) & 3, (i + 1) & 3
            mains = qk(inx, kb_next, S[inx], NM(16*inx, 16)) + pv(ip, vb_prev, P[ip & 1])
            s, p = S[i], P[i & 1]
            early = [[] for _ in range(9)]
            pre = []
            if i == 3:
                pre.append("s_waitcnt vmcnt(4)")
                ad = adv()
                early[0].append(ad[0]); early[1].append(ad[1]); early[2].append(ad[2]); early[3].append(ad[3])
                for f, l in enumerate(loadK(tb)): early[4+f].append(l)
            if i == 1:
                for f, l in enumerate(loadV((tb - 1) % NB)): early[f].append(l)
                early[3].append("s_waitcnt vmcnt(8)")
            if "noload" in dbg:
                early = [[] for _ in range(9)]; pre = []
            if i == 2:
                early[8].append(f"s_sub_u32 s{sCnt}, s{sCnt}, 1")
            a.ext(pre)
            for k in range(8):
                a(mains[k])
                a.ext(early[k])
                if "novalu" not in dbg:
                    a(f"v_exp_f32 {s(2*k)}, {s(2*k)}")
                    a(f"v_exp_f32 {s(2*k+1)}, {s(2*k+1)}")
                    if k == 0:
                        a(f"v_cvt_pk_bf16_f32 {P[ip & 1](7)}, {S[ip](14)}, {S[ip](15)}")
                    else:
                        a(f"v_cvt_pk_bf16_f32 {p(k-1)}, {s(2*k-2)}, {s(2*k-1)}")
                if k == SMF_POS and "nosum" not in dbg:
                    a(summ(ip, P[ip & 1]))
                    a.ext(early[8])
                elif k == SMF_POS:
                    a.ext(early[8])
        a(f"s_cmp_lt_i32 s{sCnt}, 0")
        if tb < NB - 1:
            a(f"s_cbranch_scc1 {name}_exit{tb}")
        else:
            a(f"s_cbranch_scc0 {name}_loop")
    for tb in reversed(range(NB)):
        a(f"{name}_exit{tb}:")
        a(f"v_cvt_pk_bf16_f32 {P[1](7)}, {S[3](14)}, {S[3](15)}")
        m = pv(3, tb, P[1])
        a.ext(m)
        a(summ(3, P[1]))
        if tb > 0:
            a(f"s_branch {name}_done")
    a(f"{name}_done:")
    stamp(3)
    a("s_nop 7"); a("s_nop 1")
    for i in range(4):
        a(f"v_add_f32 {T(8+i)}, {L(4*i)}, {L(4*i+1)}")
    a(f"v_add_f32 {T(17)}, {T(8)}, {T(9)}")
    a(f"v_add_f32 {T(18)}, {T(10)}, {T(11)}")
    a(f"v_add_f32 {T(17)}, {T(17)}, {T(18)}")
    a("v_mov_b32 v3, 0x5f800000")
    a(f"v_cmp_nlt_f32 vcc, {T(17)}, v3")
    a(f"s_cmp_lg_u32 s{sPass}, {0 if not dbg else 1}")
    a(f"s_cbranch_scc1 {name}_fin")
    a("s_nop 3")
    a(f"s_cbranch_vccz {name}_fin")
    a(f"s_mov_b32 s{sPass}, 1")
    a("s_waitcnt vmcnt(0)")
    a(f"s_mov_b32 s{sKo}, s{sStart}")
    a(f"v_add_u32 {vko}, s{sKo}, {vl16}")
    a(f"s_mov_b32 s{sCnt}, s{sN}")
    for i in range(4):
        a(f"v_mov_b32 {T(i)}, 0xff800000")
    a(f"{name}_mx:")
    a.ext(loadK(0)); a.ext(adv())
    a("s_waitcnt vmcnt(0)")
    for i in range(4):
        a.ext(qk(i, 0, NM.at(16*i), "0"))
    a("s_nop 7"); a("s_nop 7")
    for i in range(4):
        for j in range(0, 16, 2):
            a(f"v_max3_f32 {T(i)}, {T(i)}, {NM(16*i+j)}, {NM(16*i+j+1)}")
    a(f"s_sub_u32 s{sCnt}, s{sCnt}, 1")
    a(f"s_cmp_ge_i32 s{sCnt}, 0")
    a(f"s_cbranch_scc1 {name}_mx")
    for i in range(4):
        a.ext(fin(i))
    a(f"s_branch {name}_pass")

    a(f"{name}_fin:")
    a("v_lshrrev_b32 v3, 2, v1")
    a(f"s_lshl_b32 s34, s{sW}, 11")
    a("v_add_u32 v4, s34, v3")
    for i in range(4):
        a(f"ds_write_b32 v4, {NM(16*i)} offset:{i*512}")
        a(f"ds_write_b32 v4, {T(8+i)} offset:{i*512+256}")
    a(f"s_lshl_b32 s34, s{sW}, 13")
    a("v_add_u32 v5, s34, v1")
    a("v_add_u32 v5, 8192, v5")
    a("v_add_u32 v6, 65536, v5")
    for i in range(4):
        a(f"s_cmp_eq_u32 s{sW}, {i}")
        a(f"s_cbranch_scc1 {name}_skipw{i}")
        for r in range(8):
            base = "v5" if i < 2 else "v6"
            a(f"ds_write_b128 {base}, {O(32*i+4*r,4)} offset:{(i&1)*32768 + r*1024}")
        a(f"{name}_skipw{i}:")
    for i in range(4):
        a(f"s_cmp_lg_u32 s{sW}, {i}")
        a(f"s_cbranch_scc1 {name}_skipr{i}")
        for r in range(32):
            a(f"v_accvgpr_read_b32 v{16+r}, {O(32*i+r)}")
        a(f"{name}_skipr{i}:")
    a(f"s_lshl_b32 s34, s{sW}, 9")
    a("v_add_u32 v4, s34, v3")
    for k in range(1, 4):
        a(f"s_add_u32 s35, s{sW}, {k}")
        a("s_and_b32 s35, s35, 3")
        a(f"s_lshl_b32 s36, s{sW}, 2")
        a("s_add_u32 s35, s35, s36")
        a("s_lshl_b32 s35, s35, 13")
        a("s_add_u32 s35, s35, 8192")
        a(f"v_add_u32 v{6+k}, s35, v1")
    a("s_waitcnt lgkmcnt(0)")
    stamp(4)
    a("s_barrier")
    for w in range(4):
        a(f"ds_read_b32 {T(w)}, v4 offset:{w*2048}")
        a(f"ds_read_b32 {T(4+w)}, v4 offset:{w*2048+256}")
    def rd(k):
        return [f"ds_read_b128 v[{32+32*k+4*r}:{32+32*k+4*r+3}], v{6+k} offset:{r*1024}" for r in range(8)]
    a.ext(rd(1)[:7])
    a("s_waitcnt lgkmcnt(7)")
    a(f"v_min3_f32 {T(8)}, {T(0)}, {T(1)}, {T(2)}")
    a(f"v_min_f32 {T(8)}, {T(8)}, {T(3)}")
    for w in range(4):
        a(f"v_sub_f32 {T(w)}, {T(8)}, {T(w)}")
    for w in range(4):
        a(f"v_exp_f32 {T(w)}, {T(w)}")
    a.ext(rd(1)[7:] + rd(2)[:7])
    a(f"v_mul_f32 {T(9)}, {T(0)}, {T(4)}")
    for w in range(1, 4):
        a(f"v_fmac_f32 {T(9)}, {T(w)}, {T(4+w)}")
    a(f"v_rcp_f32 {T(9)}, {T(9)}")
    a("s_nop 0")
    for w in range(4):
        a(f"v_mul_f32 {T(w)}, {T(w)}, {T(9)}")
    for w in range(4):
        a(f"s_cmp_lg_u32 s{sW}, {w}")
        a(f"s_cbranch_scc1 {name}_skipg{w}")
        for k in range(4):
            a(f"v_mov_b32 {T(12+k)}, {T((w+k)&3)}")
        a(f"{name}_skipg{w}:")
    for r in range(32):
        a(f"v_mul_f32 v{16+r}, v{16+r}, {T(12)}")
    a("s_waitcnt lgkmcnt(7)")
    a.ext(rd(2)[7:] + rd(3)[:7])
    for r in range(32):
        a(f"v_fmac_f32 v{16+r}, v{64+r}, {T(13)}")
    a("s_waitcnt lgkmcnt(7)")
    a.ext(rd(3)[7:])
    for r in range(32):
        a(f"v_fmac_f32 v{16+r}, v{96+r}, {T(14)}")
    a("s_waitcnt lgkmcnt(0)")
    a(f"s_lshl_b32 s34, s{sQB}, 2")
    a(f"s_add_u32 s34, s34, s{sW}")
    a(f"s_cmp_ge_u32 s34, {NT}")
    a(f"s_cbranch_scc1 {name}_nost")
    a(f"s_lshr_b32 s35, s{sBH}, 2")
    a(f"s_mul_i32 s35, s35, {NT}")
    a("s_add_u32 s34, s34, s35")
    a("s_lshl_b32 s34, s34, 14")
    a(f"s_and_b32 s35, s{sBH}, 3")
    a("s_lshl_b32 s35, s35, 12")
    a("s_add_u32 s34, s34, s35")
    for f in range(4):
        for r in range(8*f, 8*f+8):
            a(f"v_fmac_f32 v{16+r}, v{128+r}, {T(15)}")
        for r in range(4):
            a(f"v_cvt_pk_bf16_f32 v{48+4*f+r}, v{16+8*f+2*r}, v{17+8*f+2*r}")
        a(f"buffer_store_dwordx4 v[{48+4*f}:{51+4*f}], v1, s[{sAT}:{sAT+3}], s34 offen offset:{1024*f} {store_fl}")
    a(f"{name}_nost:")
    if timing:
        tail_timing(a, sW, 1, 5)
    a(f"{name}_end:")
    a("s_endpgm")
    kernel_desc(a, name, 512, 256)

SMF_POS = 7
B_LDS = 8192 + 131072
if __name__ == "__main__":
    import sys
    a = Asm()
    dbg = sys.argv[2] if len(sys.argv) > 2 else ""
    for t in dbg.split("_"):
        if t.startswith("smf"): SMF_POS = int(t[3:])
    a(f"; @launch kernel=attn_kernel grid=({sys.argv[3] if len(sys.argv) > 3 else 256},1,1) block=(256,1,1) lds={8192+131072}")
    a('.amdgcn_target "amdgcn-amd-amdhsa--gfx950"')
    gen_attn(a, "attn_kernel", timing=True, dbg=dbg)
    open(sys.argv[1], "w").write(a.text())

B_LDS = 8192 + 131072
```

```python
from asmlib import *
from layout import *

def wave_ids(a, sW):
    a("v_lshrrev_b32 v2, 6, v0")
    a("v_and_b32 v1, 63, v0")
    a(f"v_readfirstlane_b32 s{sW}, v2")
    a("v_lshlrev_b32 v1, 4, v1")

def unpack(a, dst, src, n):
    for r in range(n):
        a(f"v_lshlrev_b32 {dst(2*r)}, 16, {src(r)}")
        a(f"v_and_b32 {dst(2*r+1)}, 0xffff0000, {src(r)}")

def pack(a, dst, src, n):
    for r in range(n):
        a(f"v_cvt_pk_bf16_f32 {dst(r)}, {src(2*r)}, {src(2*r+1)}")

def ln_partial(a, X, T, vst, off):
    a(f"v_pk_add_f32 {T(0,2)}, {X(0,2)}, {X(2,2)}")
    a(f"v_pk_mul_f32 {T(2,2)}, {X(0,2)}, {X(0,2)}")
    a(f"v_pk_fma_f32 {T(2,2)}, {X(2,2)}, {X(2,2)}, {T(2,2)}")
    for r in range(4, 32, 2):
        a(f"v_pk_add_f32 {T(0,2)}, {T(0,2)}, {X(r,2)}")
        a(f"v_pk_fma_f32 {T(2,2)}, {X(r,2)}, {X(r,2)}, {T(2,2)}")
    a(f"v_add_f32 {T(0)}, {T(0)}, {T(1)}")
    a(f"v_add_f32 {T(1)}, {T(2)}, {T(3)}")
    a(f"v_mov_b32 {T(2)}, {T(0)}")
    a(f"v_mov_b32 {T(3)}, {T(1)}")
    a("s_nop 1")
    a(f"v_permlane32_swap_b32 {T(0)}, {T(2)}")
    a(f"v_permlane32_swap_b32 {T(1)}, {T(3)}")
    a(f"v_pk_add_f32 {T(0,2)}, {T(0,2)}, {T(2,2)}")
    a(f"ds_write_b64 {vst}, {T(0,2)} offset:{off}")

def ln_read(a, T, vrd, off):
    for w in range(4):
        a(f"ds_read_b64 {T(2*w,2)}, {vrd} offset:{off + 256*w}")

def ln_finish(a, T, scale):
    a(f"v_pk_add_f32 {T(0,2)}, {T(0,2)}, {T(2,2)}")
    a(f"v_pk_add_f32 {T(4,2)}, {T(4,2)}, {T(6,2)}")
    a(f"v_pk_add_f32 {T(0,2)}, {T(0,2)}, {T(4,2)}")
    a(f"v_mul_f32 {T(2)}, {fx(1/256)}, {T(0)}")
    a(f"v_mul_f32 {T(1)}, {fx(1/256)}, {T(1)}")
    a(f"v_fma_f32 {T(1)}, -{T(2)}, {T(2)}, {T(1)}")
    a(f"v_max_f32 {T(1)}, 0, {T(1)}")
    a(f"v_add_f32 {T(1)}, {fx(1e-5)}, {T(1)}")
    a(f"v_rsq_f32 {T(0)}, {T(1)}")
    a("s_nop 0")
    if scale != 1.0:
        a(f"v_mul_f32 {T(0)}, {fx(scale)}, {T(0)}")
    a(f"v_mul_f32_e64 {T(2)}, -{T(2)}, {T(0)}")

def ln_apply(a, dst, X, T, n=32):
    for r in range(0, n, 2):
        a(f"v_pk_fma_f32 {dst(r,2)}, {X(r,2)}, {T(0,2)}, {T(2,2)} op_sel_hi:[1,0,0]")

class Stream:
    def __init__(self, a, ring, nslots, voff, sbase, total):
        self.a, self.ring, self.n, self.voff, self.sb, self.total = a, ring, nslots, voff, sbase, total
        self.li = 0
        self.ci = 0
        self.q = []
    def slot(self, f):
        return self.ring(4 * (f % self.n), 4)
    def load(self):
        f = self.li
        if f >= self.total:
            return []
        self.li += 1
        self.q.append(f)
        o = [f"global_load_dwordx4 {self.slot(f)}, {self.voff}, s[{self.sb}:{self.sb+1}] offset:{(f % 8) * 1024 - 4096}"]
        if f % 8 == 7:
            o.append(f"v_add_u32 {self.voff}, 8192, {self.voff}")
        return o
    def other(self, tag=None):
        self.q.append(tag)
    def need(self, x):
        if x not in self.q:
            return []
        i = len(self.q) - 1 - self.q[::-1].index(x)
        cnt = len(self.q) - 1 - i
        self.q = self.q[i+1:]
        assert cnt <= 63
        return [f"s_waitcnt vmcnt({cnt})"]
    def take(self, group=4):
        f = self.ci
        self.ci += 1
        w = []
        if f in self.q:
            tgt = min(f - f % group + group - 1, self.li - 1)
            w = self.need(tgt)
        return w, self.slot(f)
    def state(self):
        return (self.li - self.ci, self.li % self.n, tuple(x - self.ci if isinstance(x, int) else x for x in self.q))
    def skip(self, k):
        self.li += k; self.ci += k
        self.q = [x + k if isinstance(x, int) else x for x in self.q]

def silu_ops(acc, T, P):
    o = []
    for g in range(0, 16, 2):
        t0, t1 = T(g % 4), T(g % 4 + 1)
        o += [f"v_exp_f32 {t0}, -{acc(g)}", f"v_exp_f32 {t1}, -{acc(g+1)}",
              f"v_add_f32 {t0}, 1.0, {t0}", f"v_add_f32 {t1}, 1.0, {t1}",
              f"v_rcp_f32 {t0}, {t0}", f"v_rcp_f32 {t1}, {t1}",
              f"v_mul_f32 {t0}, {acc(g)}, {t0}", f"v_mul_f32 {t1}, {acc(g+1)}, {t1}",
              f"v_cvt_pk_bf16_f32 {P(g//2)}, {t0}, {t1}"]
    return o

def spread(fill, ngaps, first):
    out = [[] for _ in range(ngaps)]
    n = ngaps - first
    k = 0
    for i in range(n):
        tgt = (len(fill) * (i + 1) + n - 1) // n
        while k < tgt and k < len(fill):
            out[first + i].append(fill[k]); k += 1
    return out

def gen_ff(a, name, st, B, ACC1, TMP, PK, ACC2, HB, vH, sHn, vHr, sCnt, lds_h, lds_dummy, sW):
    a(f"v_add_u32 {vH}, {lds_dummy}, v1")
    a(f"s_lshl_b32 s{sHn}, s{sW}, 14")
    a(f"s_add_u32 s{sHn}, s{sHn}, {lds_h}")
    a(f"s_mov_b32 s{sCnt}, 4")
    def silu_block(acc):
        ops = silu_ops(acc, TMP, PK)
        ops.insert(36, f"ds_write_b128 {vH}, {PK(0,4)}")
        ops += [f"ds_write_b128 {vH}, {PK(4,4)} offset:1024", f"v_add_u32 {vH}, s{sHn}, v1", f"s_add_u32 s{sHn}, s{sHn}, 2048"]
        return ops
    s0 = st.state()
    a(f"{name}_g1:")
    for half in range(2):
        acc, prev = ACC1[half], ACC1[1 - half]
        gaps = spread(silu_block(prev), 16, 2)
        for ks in range(16):
            w, A = st.take()
            a.ext(w)
            a(f"v_mfma_f32_32x32x16_bf16 {acc(0,16)}, {A}, {B(4*ks,4)}, {'0' if ks == 0 else acc(0,16)}")
            a.ext(st.load())
            a.ext(gaps[ks])
    assert st.state() == s0, (st.state(), s0)
    st.skip(96)
    a(f"s_sub_u32 s{sCnt}, s{sCnt}, 1")
    a(f"s_cmp_lg_u32 s{sCnt}, 0")
    a(f"s_cbranch_scc1 {name}_g1")
    for r in range(32):
        a(f"v_mov_b32 {ACC2(r)}, 0")
    a.ext(silu_block(ACC1[1])[:-2])
    a(f"v_add_u32 {vHr}, {lds_h}, v1")
    a(f"s_mov_b32 s{sCnt}, 4")
    a("s_waitcnt lgkmcnt(0)")
    a("s_barrier")
    for k in range(3):
        a(f"ds_read_b128 {HB(4*k,4)}, {vHr} offset:{1024*k}")
    final = st.total - st.li == 96
    def body(last):
        for ks in range(16):
            a(f"s_waitcnt lgkmcnt({2 if not last else min(2, 15 - ks)})")
            for t in range(2):
                w, A = st.take()
                a.ext(w)
                a(f"v_mfma_f32_32x32x16_bf16 {ACC2(16*t,16)}, {A}, {HB(4*(ks%4),4)}, {ACC2(16*t,16)}")
                if t == 0 and not (last and ks + 3 > 15):
                    a(f"ds_read_b128 {HB(4*((ks+3)%4),4)}, {vHr} offset:{1024*(ks+3)}")
                a.ext(st.load())
    s0 = st.state()
    a(f"{name}_g2:")
    body(False)
    a(f"v_add_u32 {vHr}, 16384, {vHr}")
    a(f"s_sub_u32 s{sCnt}, s{sCnt}, 1")
    a(f"s_cmp_lg_u32 s{sCnt}, {1 if final else 0}")
    a(f"s_cbranch_scc1 {name}_g2")
    assert st.state() == s0, (st.state(), s0)
    if final:
        st.skip(64)
        body(True)
    else:
        st.skip(96)
```

```python
from common import *

A_LDS_H, A_LDS_B, A_LDS_ST, A_LDS_DUM = 0, 65536, 81920, 83968
A_LDS = 83968 + 2048

def gen_a(a, name, timing=False, stfl="sc1"):
    sW, sHn, sCnt = 20, 21, 22
    B = R("a", 0); RING = R("a", 128)
    ACC1 = [R("v", 16), R("v", 32)]; TMP = R("v", 48); PK = R("v", 52); T = R("v", 60)
    ACC2 = R("v", 80); HB = R("v", 112); XP = R("v", 128); X = R("v", 144)
    vW, vH, vHr, vst, vrd = "v2", "v3", "v4", "v5", "v6"
    def stamp(k):
        if timing: a(f"s_memtime s[{64+2*k}:{65+2*k}]")
    kernel_head(a, name)
    a("s_cmp_ge_u32 s2, 250")
    a(f"s_cbranch_scc1 {name}_end")
    a(f"s_load_dwordx2 s[4:5], s[0:1], {KA_WS}")
    a(f"s_load_dwordx2 s[6:7], s[0:1], {KA_X}")
    if timing:
        a("s_memrealtime s[40:41]"); stamp(0)
    wave_ids(a, sW)
    a("v_and_b32 v7, 31, v0")
    a("v_lshlrev_b32 v8, 9, v7")
    a("v_bfe_u32 v9, v0, 5, 1")
    a("v_lshl_add_u32 v8, v9, 4, v8")
    a("v_lshlrev_b32 v7, 3, v7")
    a(f"v_add_u32 {vrd}, {A_LDS_ST}, v7")
    a(f"s_lshl_b32 s23, s{sW}, 8")
    a(f"v_add_u32 {vst}, s23, {vrd}")
    a(f"s_mul_i32 s23, s{sW}, {NFA*1024}")
    a(f"s_add_u32 s23, s23, {WS_WA + 4096}")
    a(f"v_add_u32 {vW}, s23, v1")
    a("s_lshl_b32 s24, s2, 14")
    a(f"s_lshl_b32 s25, s{sW}, 12")
    a("s_add_u32 s26, s24, s25")
    a(f"s_add_u32 s27, s26, {WS_H1}")
    a("v_add_u32 v9, s27, v1")
    a(f"s_add_u32 m0, s25, {A_LDS_B}")
    a(f"s_lshl_b32 s27, s{sW}, 7")
    a("s_add_u32 s27, s27, s24")
    a("s_waitcnt lgkmcnt(0)")
    st = Stream(a, RING, 32, vW, 4, NFA)
    for f in range(4):
        a(f"global_load_lds_dwordx4 v9, s[4:5] offset:{1024*f}")
        st.other("h1")
    for _ in range(32):
        a.ext(st.load())
    srd(a, 8, 6, 8000 * 512)
    for f in range(4):
        a(f"buffer_load_dwordx4 {XP(4*f,4)}, v8, s[8:11], s27 offen offset:{32*f}")
        st.other("x")
    a(f"v_add_u32 v9, {A_LDS_B}, v1")
    a.ext(st.need("h1"))
    a("s_barrier")
    stamp(1)
    for ks in range(16):
        a(f"ds_read_b128 {B(4*ks,4)}, v9 offset:{1024*ks}")
    a("s_waitcnt lgkmcnt(0)")
    q_extra = [x for x in st.q if x == "x"]
    st.q = [x for x in st.q if x != "x"]
    gen_ff(a, name, st, B, ACC1, TMP, PK, ACC2, HB, vH, sHn, vHr, sCnt, A_LDS_H, A_LDS_DUM, sW)
    stamp(2)
    for f in range(4):
        a(f"v_permlane32_swap_b32 {XP(4*f)}, {XP(4*f+2)}")
        a(f"v_permlane32_swap_b32 {XP(4*f+1)}, {XP(4*f+3)}")
    unpack(a, X, XP, 16)
    a(f"s_mov_b32 s28, {fx(0.5/LOG2E)}")
    a(f"s_add_u32 s27, s26, {WS_X1}")
    a("v_add_u32 v8, s27, v1")
    for r in range(32):
        a(f"v_fmac_f32 {X(r)}, s28, {ACC2(r)}")
    pack(a, XP, X, 16)
    unpack(a, X, XP, 16)
    for f in range(4):
        a(f"global_store_dwordx4 v8, {XP(4*f,4)}, s[4:5] offset:{1024*f} {stfl}")
        st.other("st")
    ln_partial(a, X, T, vst, 0)
    a("s_waitcnt lgkmcnt(0)")
    a("s_barrier")
    ln_read(a, T, vrd, 0)
    a(f"s_lshl_b32 s27, s{sW}, 12")
    a("v_add_u32 v7, s27, v9")
    a("s_waitcnt lgkmcnt(0)")
    ln_finish(a, T, 1.0)
    ln_apply(a, X, X, T)
    for f in range(4):
        pack(a, ACC2.at(4*f), X.at(8*f), 4)
        a(f"ds_write_b128 v7, {ACC2(4*f,4)} offset:{1024*f}")
    a("s_waitcnt lgkmcnt(0)")
    a("s_barrier")
    for ks in range(16):
        a(f"ds_read_b128 {B(4*ks,4)}, v9 offset:{1024*ks}")
    a("s_cmp_ge_u32 s2, 125")
    a("s_cselect_b32 s27, 125, 0")
    a("s_cselect_b32 s28, 4, 0")
    a("s_sub_u32 s27, s2, s27")
    a(f"s_add_u32 s28, s28, s{sW}")
    a(f"s_mul_i32 s28, s28, {NT}")
    a("s_add_u32 s27, s27, s28")
    a("s_lshl_b32 s28, s27, 13")
    a(f"s_add_u32 s28, s28, {WS_KV + 4096}")
    a("v_add_u32 v7, s28, v1")
    a("s_lshl_b32 s28, s27, 12")
    a(f"s_add_u32 s28, s28, {WS_Q}")
    a("v_add_u32 v8, s28, v1")
    a(f"s_mov_b32 s28, {fx(LOG2E/8)}")
    stamp(3)
    def out_ops(j):
        acc = ACC1[j & 1]; m, t = j // 2, j & 1
        pk = PK if j % 2 == 0 else T
        o = []
        if m == 2:
            o += [f"v_mul_f32 {acc(r)}, s28, {acc(r)}" for r in range(16)]
        for s in range(2):
            o += [f"v_cvt_pk_bf16_f32 {pk(4*s+r)}, {acc(8*s+2*r)}, {acc(8*s+2*r+1)}" for r in range(4)]
            off = (2*t + s) * 1024
            if m == 0: o.append(("st", f"global_store_dwordx4 v7, {pk(4*s,4)}, s[4:5] offset:{off-4096} {stfl}"))
            if m == 1: o.append(("st", f"global_store_dwordx4 v7, {pk(4*s,4)}, s[4:5] offset:{off} {stfl}"))
            if m == 2: o.append(("st", f"global_store_dwordx4 v8, {pk(4*s,4)}, s[4:5] offset:{off} {stfl}"))
        return o
    def emit(ops):
        for x in ops:
            if isinstance(x, tuple):
                st.other(x[0]); a(x[1])
            else:
                a(x)
    for j in range(6):
        acc = ACC1[j & 1]
        gaps = spread(out_ops(j-1), 16, 3) if j > 0 else [[] for _ in range(16)]
        for ks in range(16):
            if j == 0:
                a(f"s_waitcnt lgkmcnt({15-ks})")
            w, A = st.take()
            a.ext(w)
            c = '0' if ks == 0 else acc(0, 16)
            if j // 2 == 1:
                a(f"v_mfma_f32_32x32x16_bf16 {acc(0,16)}, {B(4*ks,4)}, {A}, {c}")
            else:
                a(f"v_mfma_f32_32x32x16_bf16 {acc(0,16)}, {A}, {B(4*ks,4)}, {c}")
            a.ext(st.load())
            emit(gaps[ks])
    stamp(4)
    a("s_nop 7"); a("s_nop 3")
    emit(out_ops(5))
    if timing:
        tail_timing(a, sW, 0, 5)
    a(f"{name}_end:")
    a("s_endpgm")
    kernel_desc(a, name, 512, 256)

def tail_timing(a, sW, kidx, nst):
    a(f"s_memtime s[{64+2*nst}:{65+2*nst}]")
    a("s_waitcnt vmcnt(0)")
    a("s_memrealtime s[42:43]")
    a(f"s_memtime s[{66+2*nst}:{67+2*nst}]")
    a("s_waitcnt lgkmcnt(0)")
    srd_off(a, 48, 4, WS_TIM + kidx * 262144, 262144)
    for k in range(nst + 1, 0, -1):
        a(f"s_sub_u32 s{64+2*k}, s{64+2*k}, s{62+2*k}")
    a("v_mov_b32 v4, s40"); a("v_mov_b32 v5, s42")
    for k in range(1, 15):
        a(f"v_mov_b32 v{5+k}, {'s%d' % (64+2*k) if k <= nst + 1 else 0}")
    a(f"s_lshl_b32 s3, s2, 2"); a(f"s_add_u32 s3, s3, s{sW}"); a("s_lshl_b32 s3, s3, 6"); a("v_mov_b32 v3, s3")
    a("v_cmp_eq_u32 vcc, 0, v1"); a("s_and_saveexec_b64 s[52:53], vcc")
    for q in range(4):
        a(f"buffer_store_dwordx4 v[{4+4*q}:{7+4*q}], v3, s[48:51], 0 offen offset:{16*q}")
```

```python
from common import *
from ka import tail_timing

C_LDS_H = 0
C_LDS_AT = 0
C_LDS_G = 32768
GP = 160
C_LDS_SC = 73728
SP = 80
C_LDS_B = 94208
C_LDS_ST = 111616
C_LDS_DUM = 116736
C_LDS = 116736 + 2048
OP = 528

def gen_c(a, name, timing=False, stfl="sc1"):
    sW, sHn, sCnt = 20, 21, 22
    B = R("a", 0); RING = R("a", 128)
    ACC = R("v", 16)
    ACC1 = [R("v", 16), R("v", 32)]; TMP = R("v", 48); PK = R("v", 52)
    ACC2 = R("v", 80); HB = R("v", 112)
    XP = [R("v", 144), R("v", 160)]
    T = R("v", 176); T2 = R("v", 184)
    X3 = R("v", 192)
    G = R("v", 224)
    vW, vH, vHr, vst, vrd = "v2", "v3", "v4", "v5", "v6"
    def stamp(k):
        if timing: a(f"s_memtime s[{64+2*k}:{65+2*k}]")
    kernel_head(a, name)
    a("s_cmp_ge_u32 s2, 250")
    a(f"s_cbranch_scc1 {name}_end")
    a(f"s_load_dwordx2 s[4:5], s[0:1], {KA_WS}")
    a(f"s_load_dwordx2 s[6:7], s[0:1], {KA_OUT}")
    if timing:
        a("s_memrealtime s[40:41]"); stamp(0)
    wave_ids(a, sW)
    a("v_and_b32 v7, 31, v0")
    a("v_lshlrev_b32 v8, 3, v7")
    a(f"v_add_u32 {vrd}, {C_LDS_ST}, v8")
    a(f"s_lshl_b32 s23, s{sW}, 8")
    a(f"v_add_u32 {vst}, s23, {vrd}")
    a(f"s_mul_i32 s23, s{sW}, {NFC*1024}")
    a(f"s_add_u32 s23, s23, {WS_WC + 4096}")
    a(f"v_add_u32 {vW}, s23, v1")
    a("v_xor_b32 v8, 256, v1")
    a("v_and_b32 v9, 16, v7")
    a("v_lshlrev_b32 v9, 10, v9")
    a("v_add_u32 v8, v8, v9")
    a("s_lshl_b32 s24, s2, 14")
    a("s_sub_u32 s24, s24, 16384")
    a(f"s_lshl_b32 s25, s{sW}, 12")
    a("s_add_u32 s24, s24, s25")
    a("v_add_u32 v8, s24, v8")
    a("v_add_u32 v9, 16384, v8")
    a(f"s_add_u32 m0, s25, {C_LDS_AT}")
    a("s_waitcnt lgkmcnt(0)")
    srd_off(a, 8, 4, WS_ATT, ATT_SZ)
    srd_off(a, 12, 4, WS_X1, ATT_SZ)
    st = Stream(a, RING, 32, vW, 4, NFC)
    for tt in range(2):
        if tt == 1:
            a(f"s_add_u32 m0, s25, {C_LDS_AT + 16384}")
            a("s_nop 0")
        for f in range(4):
            a(f"buffer_load_dwordx4 v{8+tt}, s[8:11], 0 offen offset:{1024*f} lds")
            st.other("att")
    for tt in range(2):
        for f in range(4):
            a(f"buffer_load_dwordx4 {XP[tt](4*f,4)}, v{8+tt}, s[12:15], 0 offen offset:{1024*f}")
            st.other("x1")
    for _ in range(32):
        a.ext(st.load())
    srd(a, 16, 6, 8000 * 512)
    a("s_cmp_ge_u32 s2, 125")
    a("s_cselect_b32 s26, 125, 0")
    a("s_sub_u32 s26, s2, s26")
    a("s_cmp_eq_u32 s26, 0")
    a("s_cselect_b32 s30, 0, -1")
    a("s_cmp_eq_u32 s26, 124")
    a("s_cselect_b32 s31, 0, -1")
    a("s_mov_b32 s32, 0xffff0000")
    a("s_mov_b32 s33, 0xffff0000")
    a(f"v_add_u32 v9, {C_LDS_AT}, v1")
    a(f"s_lshl_b32 s27, s{sW}, 12")
    a("v_add_u32 v10, s27, v9")
    a.ext(st.need("att"))
    a("s_barrier")
    stamp(1)
    def read_b2(k0, k1):
        for ks in range(k0, k1):
            for tt in range(2):
                a(f"ds_read_b128 {B(64*tt+4*ks,4)}, v9 offset:{16384*tt + 1024*ks}")
    def gemm2x2(accf, swap):
        read_b2(0, 7)
        for ks in range(16):
            a(f"s_waitcnt lgkmcnt({min(12, 2*(15-ks))})")
            for t in range(2):
                w, A = st.take()
                a.ext(w)
                for tt in range(2):
                    acc = accf(tt, t)
                    c = '0' if ks == 0 else acc
                    b = B(64*tt+4*ks, 4)
                    a(f"v_mfma_f32_32x32x16_bf16 {acc}, {b if swap else A}, {A if swap else b}, {c}")
                    if t == 0 and ks + 7 < 16:
                        a(f"ds_read_b128 {B(64*tt+4*(ks+7),4)}, v9 offset:{16384*tt + 1024*(ks+7)}")
                a.ext(st.load())
    gemm2x2(lambda tt, t: ACC(32*tt+16*t, 16), False)
    stamp(2)
    X = [ACC.at(64), ACC.at(96)]
    for tt in range(2):
        unpack(a, X[tt], XP[tt], 16)
    for tt in range(2):
        for r in range(0, 32, 2):
            a(f"v_pk_add_f32 {X[tt](r,2)}, {X[tt](r,2)}, {ACC(32*tt+r,2)}")
        ln_partial(a, X[tt], T, vst, 1024*tt)
    for r in range(32):
        a(f"v_cndmask_b32 {X3(r)}, {X[1](r)}, {X[0](r)}, s[32:33]")
    a("s_waitcnt lgkmcnt(0)")
    a("s_barrier")
    ln_read(a, T, vrd, 0)
    ln_read(a, T2, vrd, 1024)
    for tt, t_ in enumerate((T, T2)):
        a(f"s_waitcnt lgkmcnt({4 - 4*tt if tt == 0 else 4})")
        ln_finish(a, t_, LOG2E)
        ln_apply(a, X[tt], X[tt], t_)
        for f in range(4):
            pack(a, ACC.at(16*tt + 4*f), X[tt].at(8*f), 4)
            a(f"ds_write_b128 v10, {ACC(16*tt+4*f,4)} offset:{16384*tt + 1024*f}")
    a("s_waitcnt lgkmcnt(0)")
    a("s_barrier")
    stamp(3)
    def pacc(c, sel, tt): return ACC.at(64*c + 32*sel + 16*tt)
    a("v_and_b32 v7, 31, v0")
    a(f"s_lshl_b32 s27, s{sW}, 6")
    a("v_add_u32 v7, s27, v7")
    a(f"v_mul_u32_u24 v7, {GP}, v7")
    a("v_bfe_u32 v8, v0, 5, 1")
    a("v_lshl_add_u32 v7, v8, 3, v7")
    a(f"v_add_u32 v7, {C_LDS_G}, v7")
    def glu_ops(c):
        o = []
        for tt in range(2):
            aa, bb = pacc(c, 0, tt), pacc(c, 1, tt)
            for g in range(0, 16, 2):
                t0, t1 = T(g % 4), T(g % 4 + 1)
                pk = G(8*tt + g//2)
                o += [f"v_exp_f32 {t0}, -{bb(g)}", f"v_exp_f32 {t1}, -{bb(g+1)}",
                      f"v_add_f32 {t0}, 1.0, {t0}", f"v_add_f32 {t1}, 1.0, {t1}",
                      f"v_rcp_f32 {t0}, {t0}", f"v_rcp_f32 {t1}, {t1}",
                      f"v_mul_f32 {t0}, {aa(g)}, {t0}", f"v_mul_f32 {t1}, {aa(g+1)}, {t1}",
                      f"v_cvt_pk_bf16_f32 {pk}, {t0}, {t1}"]
                if tt == 0 and g < 8: o.append(f"v_and_b32 {pk}, s30, {pk}")
                if tt == 1 and g >= 8: o.append(f"v_and_b32 {pk}, s31, {pk}")
                if g % 4 == 2:
                    i = g // 4
                    o.append(f"ds_write_b64 v7, {G(8*tt+2*i,2)} offset:{32*GP*c + 64*tt + 16*i}")
        return o
    gemm2x2(lambda tt, sel: pacc(0, sel, tt)(0, 16), True)
    gaps = spread(glu_ops(0), 64, 3)
    k = 0
    for ks in range(16):
        for sel in range(2):
            w, A = st.take()
            a.ext(w)
            for tt in range(2):
                acc = pacc(1, sel, tt)(0, 16)
                a(f"v_mfma_f32_32x32x16_bf16 {acc}, {B(64*tt+4*ks,4)}, {A}, {'0' if ks == 0 else acc}")
                if tt == 1: a.ext(st.load())
                a.ext(gaps[k]); k += 1
    stamp(4)
    a("v_bfe_u32 v8, v0, 2, 4")
    a(f"s_lshl_b32 s27, s{sW}, 6")
    a("v_add_u32 v8, s27, v8")
    a("v_and_b32 v11, 3, v0")
    a("v_lshlrev_b32 v11, 3, v11")
    a(f"v_mad_u32_u24 v12, v8, {SP}, v11" if SP <= 64 else f"v_mul_u32_u24 v12, {SP}, v8")
    if SP > 64: a("v_add_u32 v12, v12, v11")
    a(f"v_add_u32 v12, {C_LDS_SC}, v12")
    a(f"v_mul_u32_u24 v8, {GP}, v8")
    a("v_add_u32 v8, v8, v11")
    a(f"v_add_u32 v8, {C_LDS_G}, v8")
    CB = [B.at(0), B.at(64)]
    CA = [ACC.at(0), ACC.at(16)]
    def conv_reads(gp):
        return [f"ds_read_b64 {CB[gp](26*g+2*q,2)}, v8 offset:{(32*gp+16*g)*GP + 8*q}" for g in range(2) for q in range(13)]
    def conv_mfma(gp):
        o = []
        for kb in range(9):
            w, A = st.take(1)
            base = int(A[A.index("[")+1:A.index(":")])
            o += w
            for g in range(2):
                for rb in range(2):
                    acc = CA[gp](8*g+4*rb, 4)
                    o.append(f"v_mfma_f32_4x4x4_16b_bf16 {acc}, a[{base+2*g}:{base+2*g+1}], {CB[gp](26*g+2*(4*rb+kb),2)}, {'0' if kb == 0 else acc}")
            o += st.load()
        return o
    def conv_out(gp):
        ops = silu_ops(CA[gp], T, G.at(16))
        o = []
        for i in range(4):
            o += ops[18*i:18*i+18]
            o.append(f"ds_write_b64 v12, {G(16+2*i,2)} offset:{(32*gp+16*(i>>1))*SP + 32*(i&1)}")
        return o
    a("s_waitcnt lgkmcnt(0)")
    a.ext(conv_reads(0))
    g1 = glu_ops(1)
    a.ext(g1[:40])
    nds = lambda l: sum(x.startswith("ds_") for x in l)
    a(f"s_waitcnt lgkmcnt({nds(g1[:40])})")
    cm = conv_mfma(0)
    a.ext(interleave(cm, g1[40:]))
    a("s_waitcnt lgkmcnt(0)")
    a.ext(conv_reads(1))
    co = conv_out(0)
    a.ext(co[:38])
    a(f"s_waitcnt lgkmcnt({nds(co[:38])})")
    a.ext(interleave(conv_mfma(1), co[38:]))
    a("s_nop 4")
    a.ext(conv_out(1))
    a("v_bfe_u32 v8, v0, 2, 2")
    a("v_bfe_u32 v11, v0, 5, 1")
    a("v_lshl_add_u32 v8, v11, 2, v8")
    a(f"v_mul_u32_u24 v8, {SP}, v8")
    a("v_bfe_u32 v11, v0, 4, 1")
    a("v_xor_b32 v11, 1, v11")
    a("v_lshl_add_u32 v8, v11, 5, v8")
    a("v_and_b32 v11, 3, v0")
    a("v_lshl_add_u32 v8, v11, 3, v8")
    a(f"v_add_u32 v8, {C_LDS_SC}, v8")
    a("s_waitcnt lgkmcnt(0)")
    a("s_barrier")
    stamp(5)
    for ks in range(7):
        for u in range(2):
            a(f"ds_read_b64_tr_b16 {B(4*ks+2*u,2)}, v8 offset:{(16*ks+8*u)*SP}")
    for ks in range(16):
        a(f"s_waitcnt lgkmcnt({min(12, 2*(15-ks))})")
        for t in range(2):
            w, A = st.take()
            a.ext(w)
            acc = ACC2(16*t, 16)
            a(f"v_mfma_f32_32x32x16_bf16 {acc}, {A}, {B(4*ks,4)}, {'0' if ks == 0 else acc}")
            if ks + 7 < 16:
                a(f"ds_read_b64_tr_b16 {B(4*(ks+7)+2*t,2)}, v8 offset:{(16*(ks+7)+8*t)*SP}")
            a.ext(st.load())
    stamp(6)
    a(f"s_mov_b32 s28, {fx(1/LOG2E)}")
    a(f"v_add_u32 v9, {C_LDS_B}, v1")
    a(f"s_lshl_b32 s27, s{sW}, 12")
    a("v_add_u32 v10, s27, v9")
    a("s_nop 7")
    for r in range(32):
        a(f"v_fmac_f32 {X3(r)}, s28, {ACC2(r)}")
    ln_partial(a, X3, T, vst, 2048)
    a("s_waitcnt lgkmcnt(0)")
    a("s_barrier")
    ln_read(a, T, vrd, 2048)
    a("s_waitcnt lgkmcnt(0)")
    ln_finish(a, T, LOG2E)
    ln_apply(a, ACC, X3, T)
    for f in range(4):
        pack(a, ACC2.at(4*f), ACC.at(8*f), 4)
        a(f"ds_write_b128 v10, {ACC2(4*f,4)} offset:{1024*f}")
    a("s_waitcnt lgkmcnt(0)")
    a("s_barrier")
    for ks in range(16):
        a(f"ds_read_b128 {B(4*ks,4)}, v9 offset:{1024*ks}")
    a("s_waitcnt lgkmcnt(0)")
    stamp(7)
    gen_ff(a, name, st, B, ACC1, TMP, PK, ACC2, HB, vH, sHn, vHr, sCnt, C_LDS_H, C_LDS_DUM, sW)
    stamp(8)
    a(f"s_mov_b32 s28, {fx(0.5/LOG2E)}")
    a("v_and_b32 v7, 31, v0")
    a("v_xor_b32 v7, 16, v7")
    a(f"v_mul_u32_u24 v7, {OP}, v7")
    a("v_bfe_u32 v8, v0, 5, 1")
    a("v_lshl_add_u32 v10, v8, 4, v7")
    a(f"s_lshl_b32 s27, s{sW}, 7")
    a(f"s_add_u32 s27, s27, {C_LDS_B}")
    a("v_add_u32 v10, s27, v10")
    a(f"v_mul_u32_u24 v8, {OP}, v8")
    a("v_and_b32 v7, 31, v0")
    a("v_lshl_add_u32 v8, v7, 4, v8")
    a(f"s_mul_i32 s27, s{sW}, {8*OP}")
    a(f"s_add_u32 s27, s27, {C_LDS_B}")
    a("v_add_u32 v8, s27, v8")
    for r in range(32):
        a(f"v_fmac_f32 {X3(r)}, s28, {ACC2(r)}")
    ln_partial(a, X3, T, vst, 3072)
    a("s_waitcnt lgkmcnt(0)")
    a("s_barrier")
    ln_read(a, T, vrd, 3072)
    a("s_lshl_b32 s24, s2, 14")
    a(f"s_lshl_b32 s25, s{sW}, 12")
    a("s_add_u32 s24, s24, s25")
    a("s_waitcnt lgkmcnt(0)")
    ln_finish(a, T, 1.0)
    ln_apply(a, X3, X3, T)
    pack(a, ACC, X3, 16)
    a("s_nop 0")
    for f in range(4):
        a(f"v_permlane32_swap_b32 {ACC(4*f)}, {ACC(4*f+2)}")
        a(f"v_permlane32_swap_b32 {ACC(4*f+1)}, {ACC(4*f+3)}")
        a(f"ds_write_b128 v10, {ACC(4*f,4)} offset:{32*f}")
    a("s_waitcnt lgkmcnt(0)")
    a("s_barrier")
    for c in range(4):
        a(f"ds_read_b128 {ACC(16+4*c,4)}, v8 offset:{2*OP*c}")
    for c in range(4):
        a(f"s_waitcnt lgkmcnt({3-c})")
        a(f"buffer_store_dwordx4 {ACC(16+4*c,4)}, v1, s[16:19], s24 offen offset:{1024*c} {stfl}")
    if timing:
        tail_timing(a, sW, 2, 9)
    a(f"{name}_end:")
    a("s_endpgm")
    kernel_desc(a, name, 512, 256)
```

```python
NT = 125
WS_Q   = 0
WS_KV  = 4 << 20
WS_ATT = 12 << 20
WS_X1  = 16 << 20
WS_H1  = 20 << 20
WS_WA  = 24 << 20
WS_WC  = 26 << 20
WS_EXA = 28 << 20
WS_EXC = 33 << 20
WS_EX1 = 34 << 20
WS_EX2 = 38 << 20
WS_TIM = 64 << 20
NFA = 352
NFC = 402
Q_BH   = NT * 4096
KV_BH  = NT * 8192
ATT_SZ = 250 * 16384
KA_X, KA_FF1A, KA_FF1B, KA_QKV, KA_WO, KA_PW1, KA_DW, KA_PW2, KA_FF2A, KA_FF2B, KA_OUT, KA_DBG, KA_WS = [8*i for i in range(13)]
LOG2E = 1.4426950408889634
import struct
def f2u(x):
    return struct.unpack("<I", struct.pack("<f", x))[0]
def fx(x):
    return f"0x{f2u(x):08x}"
```

```python
from common import *

N_LN, N_W, N_TZ = 250, 23 * 16, 18
P_GRID = N_LN + N_W + N_TZ

def subs():
    A, C = WS_WA // 1024, WS_WC // 1024
    o = []
    def ffa(ka, base, nf, f0):
        for w in range(4):
            o.append((ka, 512 * w, 2048, 256*2048, base + w * nf + f0, 32, 1, 16))
    def ffb(ka, base, nf, f0):
        for s in range(4):
            o.append((ka, s * 256 * 512, 512, 1024*512, base + f0 + 32 * s, nf, 2, 1))
    ffa(KA_FF1A, A, NFA, 0)
    ffb(KA_FF1B, A, NFA, 128)
    for m, col in enumerate((1, 2, 0)):
        o.append((KA_QKV, 512 * col, 1536, 256*1536, A + 256 + 32 * m, NFA, 1, 16))
    o.append((KA_WO, 0, 512, 256*512, C, NFC, 2, 1))
    for sel in range(2):
        o.append((KA_PW1, 512 * sel, 1024, 256*1024, C + 32 + sel, NFC, 2, 32))
    o.append((KA_PW2, 0, 512, 256*512, C + 114, NFC, 2, 1))
    ffa(KA_FF2A, C, NFC, 146)
    ffb(KA_FF2B, C, NFC, 274)
    assert len(o) == 23
    return o

def gen_prep(a, name, stfl="sc1"):
    sW = 20
    kernel_head(a, name)
    a(f"s_cmp_ge_u32 s2, {P_GRID}")
    a(f"s_cbranch_scc1 {name}_end")
    a(f"s_load_dwordx2 s[4:5], s[0:1], {KA_WS}")
    wave_ids(a, sW)
    a(f"s_cmp_ge_u32 s2, {N_LN}")
    a(f"s_cbranch_scc1 {name}_w")
    a(f"s_load_dwordx2 s[6:7], s[0:1], {KA_X}")
    X, XP, T = R("v", 16), R("v", 48), R("v", 8)
    a("v_and_b32 v2, 31, v0")
    a("v_lshlrev_b32 v3, 9, v2")
    a("v_bfe_u32 v4, v0, 5, 1")
    a("v_lshl_add_u32 v3, v4, 4, v3")
    a("v_lshlrev_b32 v2, 3, v2")
    a(f"s_lshl_b32 s21, s{sW}, 8")
    a("v_add_u32 v4, s21, v2")
    a("s_lshl_b32 s22, s2, 14")
    a(f"s_lshl_b32 s23, s{sW}, 7")
    a("s_add_u32 s23, s23, s22")
    a("s_waitcnt lgkmcnt(0)")
    srd(a, 8, 6, 8000 * 512)
    for f in range(4):
        a(f"buffer_load_dwordx4 {XP(4*f,4)}, v3, s[8:11], s23 offen offset:{32*f}")
    srd_off(a, 12, 4, WS_H1, 250 * 16384)
    a(f"s_lshl_b32 s23, s{sW}, 12")
    a("s_add_u32 s23, s23, s22")
    a("s_waitcnt vmcnt(0)")
    for f in range(4):
        a(f"v_permlane32_swap_b32 {XP(4*f)}, {XP(4*f+2)}")
        a(f"v_permlane32_swap_b32 {XP(4*f+1)}, {XP(4*f+3)}")
    unpack(a, X, XP, 16)
    ln_partial(a, X, T, "v4", 0)
    a("s_waitcnt lgkmcnt(0)")
    a("s_barrier")
    ln_read(a, T, "v2", 0)
    a("s_waitcnt lgkmcnt(0)")
    ln_finish(a, T, LOG2E)
    ln_apply(a, X, X, T)
    pack(a, XP, X, 16)
    for f in range(4):
        a(f"buffer_store_dwordx4 {XP(4*f,4)}, v1, s[12:15], s23 offen offset:{1024*f} {stfl}")
    a("s_endpgm")
    a(f"{name}_w:")
    a(f"s_sub_u32 s21, s2, {N_LN}")
    a(f"s_cmp_ge_u32 s21, {N_W}")
    a(f"s_cbranch_scc1 {name}_tz")
    a("s_lshr_b32 s22, s21, 4")
    a("s_and_b32 s21, s21, 15")
    for i, (ka, so, rs, nb, D0, Dn, Dk, D1) in enumerate(subs()):
        if i < 22:
            a(f"s_cmp_lg_u32 s22, {i}")
            a(f"s_cbranch_scc1 {name}_n{i}")
        a(f"s_load_dwordx2 s[6:7], s[0:1], {ka}")
        a(f"s_mov_b32 s24, {so}"); a(f"s_movk_i32 s25, {rs}"); a(f"s_mov_b32 s10, {nb}")
        a(f"s_mov_b32 s26, {D0}"); a(f"s_movk_i32 s27, {Dn}"); a(f"s_movk_i32 s28, {Dk}"); a(f"s_movk_i32 s29, {D1*1024 if D1 < 32 else 0}")
        if D1 == 32:
            a("s_mov_b32 s29, 32768")
        if i < 22:
            a(f"s_branch {name}_go")
            a(f"{name}_n{i}:")
    a(f"{name}_go:")
    a("v_and_b32 v2, 31, v0")
    a("v_bfe_u32 v4, v0, 5, 1")
    a("s_lshl_b32 s30, s25, 2")
    a("v_mul_lo_u32 v4, v4, s30")
    a("v_lshl_add_u32 v3, v2, 1, v4")
    a("s_mul_i32 s30, s21, s25")
    a("s_lshl_b32 s30, s30, 4")
    a("s_add_u32 s24, s24, s30")
    a(f"s_lshl_b32 s30, s{sW}, 7")
    a("s_add_u32 s24, s24, s30")
    a(f"s_mul_i32 s27, s27, s{sW}")
    a("s_mul_i32 s28, s28, s21")
    a("s_add_u32 s26, s26, s27")
    a("s_add_u32 s26, s26, s28")
    a("s_lshl_b32 s26, s26, 10")
    a("s_add_u32 s29, s29, s26")
    a("s_mul_i32 s30, s25, 5")
    a("s_waitcnt lgkmcnt(0)")
    a("s_mov_b32 s8, s6"); a("s_mov_b32 s9, s7"); a("s_mov_b32 s11, 0x20000")
    for j in range(8):
        for t in range(2):
            a(f"buffer_load_ushort v{8+8*t+j}, v3, s[8:11], s24 offen offset:{64*t}")
        if j < 7:
            a(f"s_add_u32 s24, s24, {'s30' if j == 3 else 's25'}")
    srd(a, 12, 4, WS_WC + 4 * NFC * 1024)
    a("s_waitcnt vmcnt(0)")
    for t in range(2):
        for p in range(4):
            a(f"v_lshl_or_b32 v{24+4*t+p}, v{8+8*t+2*p+1}, 16, v{8+8*t+2*p}")
    a(f"buffer_store_dwordx4 v[24:27], v1, s[12:15], s26 offen {stfl}")
    a(f"buffer_store_dwordx4 v[28:31], v1, s[12:15], s29 offen {stfl}")
    a("s_endpgm")
    a(f"{name}_tz:")
    a(f"s_load_dwordx2 s[6:7], s[0:1], {KA_DW}")
    a(f"s_sub_u32 s21, s21, {N_W}")
    a("s_cmp_ge_u32 s21, 9")
    a("s_cselect_b32 s22, 1, 0")
    a("s_mul_i32 s23, s22, 9")
    a("s_sub_u32 s23, s21, s23")
    a("v_and_b32 v2, 3, v0")
    a("v_bfe_u32 v3, v0, 2, 4")
    a(f"s_lshl_b32 s24, s{sW}, 1")
    a("s_add_u32 s24, s24, s22")
    a("s_lshl_b32 s24, s24, 6")
    a("v_lshl_add_u32 v3, v3, 1, s24")
    a("s_lshl_b32 s23, s23, 2")
    a("s_sub_u32 s23, s23, 1")
    a("v_sub_u32 v2, s23, v2")
    for k in range(4):
        a(f"v_add_u32 v4, {k}, v2")
        a("v_min_u32 v4, 31, v4")
        a(f"v_lshl_add_u32 v{4+1+k}, v4, 9, v3")
    a(f"s_mul_i32 s26, s{sW}, {NFC}")
    a(f"s_add_u32 s26, s26, s21")
    a(f"s_add_u32 s26, s26, {WS_WC//1024 + 96}")
    a("s_lshl_b32 s26, s26, 10")
    a("s_waitcnt lgkmcnt(0)")
    srd(a, 8, 6, 31 * 512)
    for g in range(2):
        for k in range(4):
            a(f"buffer_load_ushort v{16+4*g+k}, v{5+k}, s[8:11], 0 offen offset:{32*g}")
    srd(a, 12, 4, WS_WC + 4 * NFC * 1024)
    a("s_waitcnt vmcnt(0)")
    for p in range(4):
        a(f"v_lshl_or_b32 v{24+p}, v{16+2*p+1}, 16, v{16+2*p}")
    a(f"buffer_store_dwordx4 v[24:27], v1, s[12:15], s26 offen {stfl}")
    a(f"{name}_end:")
    a("s_endpgm")
    kernel_desc(a, name, 64, 64, 40)
```

```python
import sys
from common import *
import prep, ka, attn, kc
HDR = open("standalone__conformer_family_zipformer__speech.s.ref").read().split("; Override launch")[0]
def build(path, timing=False, **kw):
    a = Asm()
    a.lines += HDR.rstrip("\n").split("\n")
    a(f"; @launch kernel=prep_kernel grid=({prep.P_GRID},1,1) block=(256,1,1) lds=1024")
    a(f"; @launch kernel=ffa_kernel grid=(250,1,1) block=(256,1,1) lds={ka.A_LDS}")
    a(f"; @launch kernel=attn_kernel grid=(256,1,1) block=(256,1,1) lds={attn.B_LDS}")
    a(f"; @launch kernel=post_kernel grid=(250,1,1) block=(256,1,1) lds={kc.C_LDS}")
    a('.amdgcn_target "amdgcn-amd-amdhsa--gfx950"')
    prep.gen_prep(a, "prep_kernel")
    ka.gen_a(a, "ffa_kernel", timing=timing)
    attn.gen_attn(a, "attn_kernel", timing=timing)
    kc.gen_c(a, "post_kernel", timing=timing)
    open(path, "w").write(a.text())
if __name__ == "__main__":
    build("standalone__conformer_family_zipformer__speech.s")
    build("full_t.s", timing=True)
```

```python
from common import *
from sched import *
from ka import tail_timing

A_LDS_H = 0
A_LDS_RING = 65536
A_LDS_ST = 131072
A_LDS = 131072 + 3072
SPIN = 400000

def csubs():
    o = [(KA_WO, 0, 512, 0, NFC, 2, 1)]
    for sel in range(2):
        o.append((KA_PW1, 512 * sel, 1024, 32 + sel, NFC, 2, 32))
    o.append((KA_PW2, 0, 512, 114, NFC, 2, 1))
    for w in range(4):
        o.append((KA_FF2A, 512 * w, 2048, w * NFC + 146, 32, 1, 16))
    for s in range(4):
        o.append((KA_FF2B, s * 256 * 512, 512, 274 + 32 * s, NFC, 2, 1))
    return o

def tr_lane_regs(a, vt, sring, tmp):
    a(f"v_bfe_u32 {tmp(0)}, v0, 2, 2")
    a(f"v_bfe_u32 {tmp(1)}, v0, 5, 1")
    a(f"v_lshl_add_u32 {tmp(1)}, {tmp(1)}, 2, {tmp(0)}")
    a(f"v_lshlrev_b32 {tmp(1)}, 7, {tmp(1)}")
    a(f"v_lshrrev_b32 {tmp(0)}, 1, {tmp(0)}")
    a(f"v_lshl_add_u32 {tmp(1)}, {tmp(0)}, 6, {tmp(1)}")
    a(f"v_bfe_u32 {tmp(0)}, v0, 4, 1")
    a(f"v_lshl_add_u32 {tmp(1)}, {tmp(0)}, 5, {tmp(1)}")
    a(f"v_and_b32 {tmp(0)}, 3, v0")
    a(f"v_lshl_add_u32 {tmp(1)}, {tmp(0)}, 3, {tmp(1)}")
    a(f"v_add_u32 {vt(0)}, s{sring}, {tmp(1)}")
    a(f"v_xor_b32 {vt(1)}, 64, {vt(0)}")

def dma_lane_regs(vrow, vchk):
    return [f"v_bfe_u32 {vrow}, v0, 3, 3",
            f"v_bfe_u32 {vchk}, v0, 4, 1",
            f"v_lshlrev_b32 {vchk}, 2, {vchk}",
            f"v_xor_b32 {vchk}, {vchk}, v0",
            f"v_and_b32 {vchk}, 7, {vchk}",
            f"v_lshlrev_b32 {vchk}, 4, {vchk}"]

def voff_setup(voff, vrow, vchk, rs):
    sh = {512: 9, 1024: 10, 2048: 11}
    o = [f"v_lshl_add_u32 {voff(0)}, {vrow}, {sh[rs]}, {vchk}"] if rs in sh else \
        [f"v_mul_u32_u24 {voff(0)}, {rs}, {vrow}", f"v_add_u32 {voff(0)}, {voff(0)}, {vchk}"]
    for i in range(1, 4):
        o.append(f"v_add_u32 {voff(i)}, {i * (8 * rs - 1024)}, {voff(0)}")
    return o

def gen_a(a, name, timing=False, stfl="sc1", code_kb=0):
    e = Em(a)
    sW, sRing, sB = 20, 21, 22
    sTile, sPart, sSide, sNonce, sReq = 24, 25, 26, 27, 28
    sW1a, sW1b, sWq = 8, 10, 12
    B = R("a", 0); RING = R("a", 128)
    VO = R("v", 2); VT = R("v", 6)
    vst, vrd, vH, vrow, vchk = "v8", "v9", "v10", "v11", "v12"
    ACC = R("v", 16)
    TMP = R("v", 144); PK = R("v", 148); HB = R("v", 156); XP = R("v", 180); T = R("v", 196); T2 = R("v", 204)
    M = R("v", 212)
    def stamp(k):
        if timing: a(f"s_memtime s[{64+2*k}:{65+2*k}]")
    kernel_head(a, name)
    e("s_cmp_ge_u32 s2, 256")
    e(f"s_cbranch_scc1 {name}_end")
    e(f"s_load_dwordx4 s[4:7], s[0:1], {KA_X}")
    e(f"s_load_dwordx4 s[8:11], s[0:1], {KA_FF1B}")
    e(f"s_load_dwordx2 s[14:15], s[0:1], {KA_WS}")
    if timing:
        e("s_memrealtime s[40:41]"); stamp(0)
    wave_ids(e, sW)
    e("s_and_b32 s29, s2, 7")
    e("s_lshr_b32 s30, s2, 3")
    e(f"s_lshl_b32 s{sTile}, s29, 5")
    e(f"s_add_u32 s{sTile}, s{sTile}, s30")
    e(f"s_xor_b32 s{sPart}, s{sTile}, 1")
    e(f"s_and_b32 s{sSide}, s30, 1")
    e(f"s_lshl_b32 s{sRing}, s{sW}, 14")
    e(f"s_add_u32 s{sRing}, s{sRing}, {A_LDS_RING}")
    e.ext(dma_lane_regs(vrow, vchk))
    e(f"s_cmp_ge_u32 s{sTile}, 250")
    e(f"s_cbranch_scc1 {name}_cprep")
    e(f"v_and_b32 {M(0)}, 31, v0")
    e(f"v_lshlrev_b32 {M(1)}, 9, {M(0)}")
    e(f"v_bfe_u32 {M(2)}, v0, 5, 1")
    e(f"v_lshl_add_u32 {M(1)}, {M(2)}, 4, {M(1)}")
    e(f"s_lshl_b32 s31, s{sW}, 7")
    e(f"s_lshl_b32 s32, s{sTile}, 14"); e("s_add_u32 s32, s32, s31")
    e(f"s_lshl_b32 s33, s{sPart}, 14"); e("s_add_u32 s33, s33, s31")
    e(f"v_add_u32 {M(2)}, s32, {M(1)}")
    e(f"v_add_u32 {M(3)}, s33, {M(1)}")
    c1a = f"s_lshl_b32 s34, s{sSide}, 10"
    segs = [
        dict(n=16, step=32*2048, jump=(8, -256*2048 + 128), setup=[
            f"s_lshl_b32 s34, s{sSide}, 10", f"s_lshl_b32 s35, s{sW}, 8", "s_add_u32 s34, s34, s35",
            f"s_add_u32 s{sB}, s6, s34", f"s_addc_u32 s{sB+1}, s7, 0"] + voff_setup(VO, vrow, vchk, 2048)),
        dict(n=16, step=None, setup=[
            f"s_lshl_b32 s34, s{sSide}, 18", f"s_lshl_b32 s35, s{sW}, 7", "s_add_u32 s34, s34, s35",
            f"s_add_u32 s{sB}, s8, s34", f"s_addc_u32 s{sB+1}, s9, 0"] + voff_setup(VO, vrow, vchk, 512)),
        dict(n=24, step=32*1536, jump=(8, -256*1536 + 512), setup=[
            f"s_lshl_b32 s35, s{sW}, 7",
            f"s_add_u32 s{sB}, s10, s35", f"s_addc_u32 s{sB+1}, s11, 0"] + voff_setup(VO, vrow, vchk, 1536)),
    ]
    segs[1]["stepf"] = lambda k: 512 * (-352 if k == 8 else (32 if k % 2 else 96))
    st = TStream(e, RING, 8, VO, sB, sRing, VT, segs)
    e.stream = st
    e("s_waitcnt lgkmcnt(0)")
    XQ = [XP, ACC.at(64)]
    for tt in range(2):
        for f in range(4):
            e(f"global_load_dwordx4 {XQ[tt](4*f,4)}, {M(2+tt)}, s[4:5] offset:{32*f}", "x")
    for _ in range(12):
        st.dma()
    e("s_xor_b32 s31, s2, 8")
    e(f"s_lshl_b32 s31, s31, 2"); e(f"s_add_u32 s31, s31, s{sW}")
    e(f"s_lshl_b32 s32, s2, 2"); e(f"s_add_u32 s32, s32, s{sW}")
    e(f"s_lshl_b32 s33, s31, 8"); e(f"s_add_u32 s33, s33, {WS_EXC}"); e(f"v_mov_b32 {M(4)}, s33")
    e(f"s_lshl_b32 s33, s32, 8"); e(f"s_add_u32 s33, s33, {WS_EXC}"); e(f"v_mov_b32 {M(5)}, s33")
    e(f"s_lshl_b32 s33, s31, 12"); e(f"s_add_u32 s33, s33, {WS_EXA}"); e(f"v_add_u32 {M(6)}, s33, v1")
    e(f"s_lshl_b32 s33, s32, 12"); e(f"s_add_u32 s33, s33, {WS_EXA}"); e(f"v_add_u32 {M(7)}, s33, v1")
    e(f"global_load_dword {M(8)}, {M(4)}, s[14:15] offset:128 sc1", "old")
    e(f"s_lshl_b32 s33, s30, 2"); e(f"s_add_u32 s33, s33, s{sW}")
    e(f"s_mul_i32 s34, s33, 3072"); e("s_lshl_b32 s33, s33, 12")
    e(f"v_lshlrev_b32 {M(9)}, 7, {M(0)}")
    e(f"v_add_u32 {M(10)}, s33, {M(9)}")
    e(f"v_min_u32 {M(9)}, 2944, {M(9)}")
    e(f"v_add_u32 {M(9)}, s34, {M(9)}")
    e(f"global_load_dword v13, {M(10)}, s[6:7]")
    e(f"global_load_dword v14, {M(10)}, s[8:9]")
    e(f"global_load_dword v15, {M(9)}, s[10:11]")
    if code_kb:
        e("s_getpc_b64 s[36:37]")
        e(f"v_lshlrev_b32 {M(9)}, 3, v1")
        for k in range(0, code_kb, 8):
            e(f"global_load_dword v13, {M(9)}, s[36:37]")
            if k + 8 < code_kb: e(f"v_add_u32 {M(9)}, 8192, {M(9)}")
    tr_lane_regs(e, VT, sRing, T)
    e(f"v_lshlrev_b32 {M(0)}, 3, {M(0)}")
    e(f"v_add_u32 {vrd}, {A_LDS_ST}, {M(0)}")
    e(f"s_lshl_b32 s33, s{sW}, 8")
    e(f"v_add_u32 {vst}, s33, {vrd}")
    e(f"s_lshl_b32 s33, s{sW}, 13")
    e(f"v_add_u32 {vH}, s33, v1")
    e(f"s_lshl_b32 s33, s{sW}, 12")
    e(f"v_add_u32 {M(0)}, s33, v1")
    X = [ACC.at(0), ACC.at(32)]
    e.wait(vm="x")
    stamp(1)
    for tt in range(2):
        for f in range(4):
            e(f"v_permlane32_swap_b32 {XQ[tt](4*f)}, {XQ[tt](4*f+2)}")
            e(f"v_permlane32_swap_b32 {XQ[tt](4*f+1)}, {XQ[tt](4*f+3)}")
        unpack(e, X[tt], XQ[tt], 16)
        ln_partial(e, X[tt], T, vst, 1024*tt)
    e.wait_lg0(); e("s_barrier")
    ln_read(e, T, vrd, 0); ln_read(e, T2, vrd, 1024)
    e.wait(vm="old")
    e(f"v_add_u32 {M(8)}, 1, {M(8)}")
    e(f"global_store_dword {M(5)}, {M(8)}, s[14:15] sc1")
    e.lg.drain()
    for tt, t_ in enumerate((T, T2)):
        e.raw("s_waitcnt lgkmcnt(4)")
        ln_finish(e, t_, LOG2E)
        ln_apply(e, X[tt], X[tt], t_)
        for f in range(4):
            pack(e, ACC.at(64 + 16*tt + 4*f), X[tt].at(8*f), 4)
            e(f"ds_write_b128 {M(0)}, {ACC(64+16*tt+4*f,4)} offset:{32768 + 16384*tt + 1024*f}")
    e(f"v_readfirstlane_b32 s{sNonce}, {M(8)}")
    e.wait_lg0(); e("s_barrier")
    for _ in range(8): st.tr()
    for ks in range(16):
        for tt in range(2):
            e(f"ds_read_b128 {B(64*tt+4*ks,4)}, v1 offset:{32768 + 16384*tt + 1024*ks}", ("b", ks))
    stamp(2)
    def a1(cp, tt, t): return ACC.at(64*cp + 32*tt + 16*t)
    def hoff(cp, w, t, s, tt): return (cp*16 + w*4 + 2*t + s) * 2048 + tt * 1024
    def silu_all(cp):
        o = []
        for t in range(2):
            for tt in range(2):
                ops = silu_ops(a1(cp, tt, t), TMP, PK)
                ops.insert(36, f"ds_write_b128 {vH}, {PK(0,4)} offset:{hoff(cp,0,t,0,tt)}")
                ops.append(f"ds_write_b128 {vH}, {PK(4,4)} offset:{hoff(cp,0,t,1,tt)}")
                o += ops
        return o
    def mm(acc, A, Bop, first): e(f"v_mfma_f32_32x32x16_bf16 {acc(0,16)}, {A}, {Bop}, {'0' if first else acc(0,16)}")
    for cp in range(2):
        gaps = spread(silu_all(0), 64, 3) if cp == 1 else [[] for _ in range(64)]
        k = 0
        for ks in range(16):
            if cp == 0: e.wait(lg=("b", ks))
            for t in range(2):
                A = st.take()
                for tt in range(2):
                    mm(a1(cp, tt, t), A, B(64*tt+4*ks, 4), ks == 0)
                    if tt == 0: st.dma()
                    else: st.tr(); st.tr()
                    e.ext(gaps[k]); k += 1
    stamp(3)
    e.wait_lg0(16); e("s_barrier")
    def a2(tt, t): return ACC.at(32*tt + 16*t)
    def hread(kk):
        cp, w, t, s = kk >> 4, (kk >> 2) & 3, (kk >> 1) & 1, kk & 1
        return [(f"ds_read_b128 {HB(8*(kk%3)+4*tt,4)}, v1 offset:{hoff(cp,w,t,s,tt)}", ("h", kk)) for tt in range(2)]
    for cp in range(2):
        gaps = spread(silu_all(1), 64, 3) if cp == 0 else [[] for _ in range(64)]
        e.ext(hread(16*cp) + hread(16*cp+1))
        k = 0
        for kk in range(16*cp, 16*cp+16):
            e.wait(lg=("h", kk))
            nxt = hread(kk+2) if kk + 2 < 16*cp + 16 else []
            for t in range(2):
                A = st.take()
                for tt in range(2):
                    mm(a2(tt, t), A, HB(8*(kk%3)+4*tt, 4), kk == 0)
                    if tt == 0:
                        st.dma()
                        if nxt: e.ext([nxt[t]])
                    else: st.tr(); st.tr()
                    e.ext(gaps[k]); k += 1
            if kk == 20:
                e(f"global_load_dword {M(9)}, {M(4)}, s[14:15] sc1", "req")
        if cp == 0:
            stamp(4)
            e.wait_lg0(16); e("s_barrier")
    stamp(5)
    RX = ACC.at(64); X1 = ACC.at(96)
    unpack(e, X1, XP, 16)
    for f in range(4):
        pack(e, RX.at(4*f), a2(1, 0).at(8*f), 4)
        e(f"global_store_dwordx4 {M(7)}, {RX(4*f,4)}, s[14:15] offset:{1024*f} sc1", "ex")
    e(f"s_mov_b32 s31, {fx(0.5/LOG2E)}")
    for _ in range(8): st.step()
    for r in range(32):
        e(f"v_fmac_f32 {X1(r)}, s31, {a2(0,0)(r)}")
    e.wait(vm="ex")
    e(f"global_store_dword {M(5)}, {M(9)}, s[14:15] offset:128 sc1")
    e(f"v_readfirstlane_b32 s{sReq}, {M(9)}")
    e(f"s_mov_b32 s33, {SPIN}")
    e(f"{name}_poll:")
    e(f"global_load_dword {M(10)}, {M(4)}, s[14:15] offset:128 sc1")
    e(f"global_load_dword {M(9)}, {M(4)}, s[14:15] sc1")
    e.raw("s_waitcnt vmcnt(0)"); e.vm.drain()
    e(f"v_readfirstlane_b32 s34, {M(10)}")
    e(f"v_readfirstlane_b32 s35, {M(9)}")
    e(f"s_cmp_eq_u32 s34, s{sNonce}")
    e(f"s_cbranch_scc1 {name}_got")
    e(f"s_cmp_eq_u32 s35, s{sReq}")
    e(f"s_cbranch_scc1 {name}_same")
    e(f"s_mov_b32 s{sReq}, s35")
    e.raw(f"global_store_dword {M(5)}, {M(9)}, s[14:15] offset:128 sc1")
    e(f"{name}_same:")
    e("s_sub_u32 s33, s33, 1")
    e("s_cmp_lg_u32 s33, 0")
    e(f"s_cbranch_scc1 {name}_poll")
    e(f"{name}_got:")
    for f in range(4):
        e(f"global_load_dwordx4 {RX(4*f,4)}, {M(6)}, s[14:15] offset:{1024*f} sc1", ("rx", f))
    e(f"global_load_dword {M(9)}, {M(4)}, s[14:15] sc1", "req2")
    stamp(6)
    for _ in range(8): st.step()
    e(f"s_lshl_b32 s33, s{sTile}, 14"); e(f"s_lshl_b32 s34, s{sW}, 12"); e("s_add_u32 s33, s33, s34")
    e(f"s_add_u32 s33, s33, {WS_X1}")
    e(f"v_add_u32 {M(1)}, s33, v1")
    e.auto = True
    U = ACC.at(0)
    for f in range(4):
        e.wait(vm=("rx", f))
        unpack(e, U.at(8*f), RX.at(4*f), 4)
        for r in range(8*f, 8*f+8):
            e(f"v_fmac_f32 {X1(r)}, s31, {U(r)}")
        pack(e, XP.at(4*f), X1.at(8*f), 4)
        e(f"global_store_dwordx4 {M(1)}, {XP(4*f,4)}, s[14:15] offset:{1024*f} {stfl}")
    unpack(e, X1, XP, 16)
    ln_partial(e, X1, T, vst, 2048)
    e.auto = False
    e.wait(vm="req2")
    e(f"v_readfirstlane_b32 s35, {M(9)}")
    e("s_nop 3")
    e(f"s_cmp_eq_u32 s35, s{sReq}")
    e(f"s_cbranch_scc1 {name}_echo")
    e.raw(f"global_store_dword {M(5)}, {M(9)}, s[14:15] offset:128 sc1")
    e(f"{name}_echo:")
    e.wait_lg0(); st.rdone = st.r // 8
    e("s_barrier")
    ln_read(e, T, vrd, 2048)
    e("s_cmp_ge_u32 s%d, 125" % sTile)
    e("s_cselect_b32 s33, 125, 0")
    e("s_cselect_b32 s34, 4, 0")
    e(f"s_sub_u32 s33, s{sTile}, s33")
    e(f"s_add_u32 s34, s34, s{sW}")
    e(f"s_mul_i32 s34, s34, {NT}")
    e("s_add_u32 s33, s33, s34")
    e("s_lshl_b32 s34, s33, 13")
    e(f"s_add_u32 s34, s34, {WS_KV + 4096}")
    e(f"v_add_u32 {M(2)}, s34, v1")
    e("s_lshl_b32 s34, s33, 12")
    e(f"s_add_u32 s34, s34, {WS_Q}")
    e(f"v_add_u32 {M(3)}, s34, v1")
    e(f"s_mov_b32 s31, {fx(LOG2E/8)}")
    e.wait_lg0()
    e.auto = True
    ln_finish(e, T, 1.0)
    ln_apply(e, X1, X1, T)
    for f in range(4):
        pack(e, U.at(4*f), X1.at(8*f), 4)
        e(f"ds_write_b128 {M(0)}, {U(4*f,4)} offset:{1024*f}")
    e.auto = False
    e.wait_lg0(); st.rdone = st.r // 8
    e("s_barrier")
    for ks in range(16):
        e(f"ds_read_b128 {B(4*ks,4)}, v1 offset:{1024*ks}", ("b", ks))
    stamp(7)
    def aq(m, t): return ACC.at(32*(m & 1) + 16*t)
    def out_ops(m):
        o = []
        for t in range(2):
            acc = aq(m, t); pk = ACC.at(64 + 16*(m & 1) + 8*t)
            if m == 0:
                o += [f"v_mul_f32 {acc(r)}, s31, {acc(r)}" for r in range(16)]
            for s in range(2):
                o += [f"v_cvt_pk_bf16_f32 {pk(4*s+r)}, {acc(8*s+2*r)}, {acc(8*s+2*r+1)}" for r in range(4)]
                off = (2*t + s) * 1024
                o.append(f"global_store_dwordx4 {M(3) if m == 0 else M(2)}, {pk(4*s,4)}, s[14:15] offset:{off - (4096 if m == 1 else 0)} {stfl}")
        return o
    for m in range(3):
        gaps = spread(out_ops(m-1), 32, 3) if m > 0 else [[] for _ in range(32)]
        k = 0
        for ks in range(16):
            if m == 0: e.wait(lg=("b", ks))
            for t in range(2):
                A = st.take()
                if m == 2: mm(aq(m, t), B(4*ks, 4), A, ks == 0)
                else: mm(aq(m, t), A, B(4*ks, 4), ks == 0)
                st.pump()
                e.ext(gaps[k]); k += 1
    stamp(8)
    e("s_nop 7"); e("s_nop 3")
    e.ext(out_ops(2))
    if timing:
        a("s_mov_b64 s[4:5], s[14:15]")
        tail_timing(a, sW, 0, 9)
    a("s_endpgm")

    a(f"{name}_cprep:")
    a("s_sub_u32 s31, s30, 26")
    a("s_lshl_b32 s31, s31, 2")
    a(f"s_add_u32 s31, s31, s{sW}")
    a("s_lshr_b32 s32, s31, 1")
    a("s_and_b32 s33, s31, 1")
    a("s_waitcnt lgkmcnt(0)")
    cs = csubs()
    for i, (ka, so, rs, D0, Dn, Dk, D1) in enumerate(cs):
        if i < len(cs) - 1:
            a(f"s_cmp_lg_u32 s32, {i}")
            a(f"s_cbranch_scc1 {name}_n{i}")
        a(f"s_load_dwordx2 s[6:7], s[0:1], {ka}")
        a(f"s_mov_b32 s34, {so}"); a(f"s_movk_i32 s35, {rs}")
        a(f"s_movk_i32 s36, {D0}"); a(f"s_movk_i32 s37, {Dn}"); a(f"s_movk_i32 s38, {Dk*1024}"); a(f"s_mov_b32 s39, {D1*1024}")
        if i < len(cs) - 1:
            a(f"s_branch {name}_go")
            a(f"{name}_n{i}:")
    a(f"{name}_go:")
    a(f"s_lshl_b32 s{sRing}, s{sW}, 15")
    tr_lane_regs(a, VT, sRing, T)
    a(f"v_mul_lo_u32 {VO(0)}, {vrow}, s35")
    a(f"v_add_u32 {VO(0)}, {VO(0)}, {vchk}")
    a("s_lshl_b32 s44, s35, 3"); a("s_sub_u32 s44, s44, 1024")
    for i in range(1, 4):
        a(f"v_add_u32 {VO(i)}, s44, {VO(i-1)}")
    a("s_lshl_b32 s44, s33, 8"); a("s_add_u32 s34, s34, s44")
    a("s_lshl_b32 s44, s33, 1"); a("s_mul_i32 s44, s44, s37"); a("s_add_u32 s36, s36, s44")
    a("s_lshl_b32 s36, s36, 10"); a("s_lshl_b32 s37, s37, 10")
    a("s_lshl_b32 s35, s35, 5")
    srd_off(a, 8, 14, WS_WC, 4 * NFC * 1024)
    a("s_mov_b32 s45, 2")
    a("s_waitcnt lgkmcnt(0)")
    a("s_add_u32 s6, s6, s34"); a("s_addc_u32 s7, s7, 0")
    a(f"{name}_round:")
    a(f"s_mov_b64 s[{sB}:{sB+1}], s[6:7]")
    a(f"s_mov_b32 m0, s{sRing}")
    a("s_mov_b32 s46, 8")
    a(f"{name}_iss:")
    for i in range(4):
        a(f"global_load_lds_dwordx4 {VO(i)}, s[{sB}:{sB+1}] offset:{1024*i}")
    a(f"s_add_u32 s{sB}, s{sB}, s35"); a(f"s_addc_u32 s{sB+1}, s{sB+1}, 0")
    a("s_add_u32 m0, m0, 4096")
    a("s_sub_u32 s46, s46, 1"); a("s_cmp_lg_u32 s46, 0"); a(f"s_cbranch_scc1 {name}_iss")
    a(f"v_mov_b32 {T(0)}, {VT(0)}"); a(f"v_mov_b32 {T(1)}, {VT(1)}")
    a("s_mov_b32 s47, s36")
    a("s_mov_b32 s46, 8")
    a(f"{name}_cv:")
    a("s_waitcnt vmcnt(28)")
    for sl in range(2):
        for t in range(2):
            for u in range(2):
                a(f"ds_read_b64_tr_b16 {ACC(8*sl+4*t+2*u,2)}, {T(t)} offset:{2048*sl + 1024*u}")
    a(f"v_add_u32 {T(0)}, 4096, {T(0)}"); a(f"v_add_u32 {T(1)}, 4096, {T(1)}")
    a("s_add_u32 s44, s47, s39")
    a("s_waitcnt lgkmcnt(0)")
    for sl in range(2):
        a(f"buffer_store_dwordx4 {ACC(8*sl,4)}, v1, s[8:11], s47 offen {stfl}")
        a(f"buffer_store_dwordx4 {ACC(8*sl+4,4)}, v1, s[8:11], s44 offen {stfl}")
        a("s_add_u32 s47, s47, s38"); a("s_add_u32 s44, s44, s38")
    a("s_sub_u32 s46, s46, 1"); a("s_cmp_lg_u32 s46, 0"); a(f"s_cbranch_scc1 {name}_cv")
    a("s_add_u32 s6, s6, 128"); a("s_addc_u32 s7, s7, 0")
    a("s_add_u32 s36, s36, s37")
    a("s_sub_u32 s45, s45, 1"); a("s_cmp_lg_u32 s45, 0"); a(f"s_cbranch_scc1 {name}_round")
    a(f"s_load_dwordx2 s[6:7], s[0:1], {KA_DW}")
    a("s_mul_i32 s31, s31, 3")
    a("s_mov_b32 s45, 3")
    a("s_waitcnt lgkmcnt(0)")
    srd(a, 16, 6, 31 * 512)
    a(f"{name}_tz:")
    a("s_mul_i32 s32, s31, 3641"); a("s_lshr_b32 s32, s32, 16")
    a("s_mul_i32 s33, s32, 18"); a("s_sub_u32 s33, s31, s33")
    a("s_cmp_ge_u32 s33, 9"); a("s_cselect_b32 s34, 1, 0")
    a("s_mul_i32 s35, s34, 9"); a("s_sub_u32 s35, s33, s35")
    a("v_and_b32 v2, 3, v0")
    a("v_bfe_u32 v3, v0, 2, 4")
    a("s_lshl_b32 s36, s32, 1"); a("s_add_u32 s36, s36, s34"); a("s_lshl_b32 s36, s36, 6")
    a("v_lshl_add_u32 v3, v3, 1, s36")
    a("s_lshl_b32 s35, s35, 2"); a("s_sub_u32 s35, s35, 1")
    a("v_sub_u32 v2, s35, v2")
    for k in range(4):
        a(f"v_add_u32 v4, {k}, v2")
        a("v_min_u32 v4, 31, v4")
        a(f"v_lshl_add_u32 v{5+k}, v4, 9, v3")
    a(f"s_mul_i32 s36, s32, {NFC}"); a("s_add_u32 s36, s36, s33"); a("s_add_u32 s36, s36, 96"); a("s_lshl_b32 s36, s36, 10")
    for g in range(2):
        for k in range(4):
            a(f"buffer_load_ushort v{16+4*g+k}, v{5+k}, s[16:19], 0 offen offset:{32*g}")
    a("s_waitcnt vmcnt(0)")
    for p in range(4):
        a(f"v_lshl_or_b32 v{24+p}, v{16+2*p+1}, 16, v{16+2*p}")
    a(f"buffer_store_dwordx4 v[24:27], v1, s[8:11], s36 offen {stfl}")
    a("s_add_u32 s31, s31, 1")
    a("s_sub_u32 s45, s45, 1"); a("s_cmp_lg_u32 s45, 0"); a(f"s_cbranch_scc1 {name}_tz")
    if timing:
        a("s_mov_b64 s[4:5], s[14:15]")
        tail_timing(a, sW, 3, 1)
    a(f"{name}_end:")
    a("s_endpgm")
    kernel_desc(a, name, 512, 256)
```

```python
from asmlib import *

class Counter:
    def __init__(self, name, maxv):
        self.name, self.maxv, self.q = name, maxv, []
    def add(self, tag=None):
        self.q.append(tag)
    def need(self, tag):
        if tag not in self.q:
            return None
        i = len(self.q) - 1 - self.q[::-1].index(tag)
        cnt = len(self.q) - 1 - i
        self.q = self.q[i+1:]
        return min(cnt, self.maxv)
    def drain(self):
        self.q = []

def cost(s):
    op = s.split()[0]
    if op.startswith(("v_exp", "v_rcp", "v_rsq", "v_log", "v_sqrt")): return 8
    if op == "s_nop": return 4 * (int(s.split()[1]) + 1)
    if op == "s_barrier": return 120
    if op.startswith("buffer_"): return 8
    if op.startswith("ds_write_b128"): return 12
    if op.endswith(":") or op.startswith((".", ";")): return 0
    return 4

class Em:
    def __init__(self, a):
        self.a = a
        self.vm = Counter("vmcnt", 63)
        self.lg = Counter("lgkmcnt", 15)
        self.t = 0; self.pipe = 0
        self.stream = None
        self.auto = False
        self.inpump = False
    def raw(self, s):
        op = s.split()[0]
        if op.startswith(("v_mfma", "v_smfmac")):
            d = 32 if "32x32" in op else (8 if "4x4" in op else 16)
            st = max(self.t, self.pipe); self.pipe = st + d; self.t = st + min(8, d)
        else:
            self.t += cost(s)
        self.a(s)
    def __call__(self, s, tag=None):
        op = s.split()[0]
        if op.startswith("ds_"): self.lg.add(tag)
        elif op.startswith(("buffer_", "global_")): self.vm.add(tag)
        self.raw(s)
        if self.auto and not self.inpump and self.stream and not op.startswith(("s_cmp", "v_cmp", "s_cbranch")) and not s.endswith(":"):
            self.pump()
    def ext(self, lst):
        for x in lst:
            if isinstance(x, tuple): self(x[0], x[1])
            else: self(x)
    def wait(self, vm=None, lg=None, extra=0):
        p = []
        if vm is not None:
            c = self.vm.need(vm)
            if c is not None: p.append(f"vmcnt({c})")
        if lg is not None:
            c = self.lg.need(lg)
            if c is not None: p.append(f"lgkmcnt({c})")
        if p:
            self.raw("s_waitcnt " + " ".join(p)); self.t += extra
    def wait_lg0(self, extra=64):
        self.lg.drain(); self.raw("s_waitcnt lgkmcnt(0)"); self.t += extra
    def pump(self, force=False):
        if self.stream is None: return
        self.inpump = True
        self.stream.pump(force)
        self.inpump = False

class DStream:
    def __init__(self, e, ring, n, voff, sbase, total, pace=68, dmin=14):
        self.e, self.ring, self.n, self.voff, self.sb, self.total = e, ring, n, voff, sbase, total
        self.pace, self.dmin = pace, dmin
        self.li = self.ci = 0; self.last = -10**9
        self.hold = None
    def slot(self, f): return self.ring(4 * (f % self.n), 4)
    def load(self):
        f = self.li
        if f >= self.total or f - self.ci >= self.n: return False
        self.li += 1
        self.e(f"global_load_dwordx4 {self.slot(f)}, {self.voff}, s[{self.sb}:{self.sb+1}] offset:{(f % 8) * 1024 - 4096}", ("w", f))
        if f % 8 == 7: self.e(f"v_add_u32 {self.voff}, 8192, {self.voff}")
        self.last = self.e.t
        return True
    def pump(self, force=False):
        if force or self.e.t - self.last >= self.pace or self.li - self.ci < self.dmin:
            self.load()
    def take(self, group=4):
        f = self.ci
        assert f < self.li, "fragment consumed before it was loaded"
        tgt = min(f - f % group + group - 1, self.li - 1)
        if ("w", f) in self.e.vm.q: self.e.wait(vm=("w", tgt))
        self.ci += 1
        return self.slot(f)
    def rel(self, x): return (x[0], x[1] - self.ci) if isinstance(x, tuple) else x
    def state(self):
        return (self.li - self.ci, self.ci % self.n, tuple(self.rel(x) for x in self.e.vm.q), tuple(self.rel(x) for x in self.e.lg.q))
    def skip(self, k):
        sh = lambda x: (x[0], x[1] + k) if isinstance(x, tuple) else x
        self.li += k; self.ci += k
        self.e.vm.q = [sh(x) for x in self.e.vm.q]; self.e.lg.q = [sh(x) for x in self.e.lg.q]

class TStream:
    NG = 4
    def __init__(self, e, ring, nr, voff, sb, sring, vt, segs, pace=272):
        self.e, self.ring, self.nr, self.voff, self.sb, self.sring, self.vt = e, ring, nr, voff, sb, sring, vt
        self.segs = segs; self.pace = pace
        self.total = sum(s["n"] for s in segs)
        self.d = 0
        self.r = 0
        self.ci = 0
        self.rdone = 0
        self.last = -10**9
    def seg(self, g):
        for s in self.segs:
            if g < s["n"]: return s, g
            g -= s["n"]
    def slot(self, f): return self.ring(4 * (f % (4 * self.nr)), 4)
    def dma(self):
        g, i = divmod(self.d, 4)
        if g >= self.total: return False
        if g - self.NG >= self.rdone:
            if 8 * (g - self.NG + 1) > self.r: return False
            self.e.wait(lg=("r", 4 * (g - self.NG) + 3)); self.rdone = g - self.NG + 1
        e = self.e
        if i == 0:
            s, k = self.seg(g)
            if k == 0: e.ext(s["setup"])
            else:
                step = s["stepf"](k) if "stepf" in s else s["step"] + (s["jump"][1] if "jump" in s and k % s["jump"][0] == 0 else 0)
                if step >= 0:
                    e(f"s_add_u32 s{self.sb}, s{self.sb}, {step}"); e(f"s_addc_u32 s{self.sb+1}, s{self.sb+1}, 0")
                else:
                    e(f"s_sub_u32 s{self.sb}, s{self.sb}, {-step}"); e(f"s_subb_u32 s{self.sb+1}, s{self.sb+1}, 0")
            e(f"s_add_u32 m0, s{self.sring}, {(g % self.NG) * 4096}")
            e("s_nop 0")
        e(f"global_load_lds_dwordx4 {self.voff(i)}, s[{self.sb}:{self.sb+1}] offset:{1024*i}", ("d", 4 * g))
        self.d += 1
        self.last = e.t
        return True
    def tr(self):
        g, j = divmod(self.r, 8)
        if g >= self.total or 4 * (g + 1) > self.d: return False
        sl, t, u = j >> 2, (j >> 1) & 1, j & 1
        f = 4 * g + 2 * sl + t
        if f - self.ci >= 4 * self.nr: return False
        if j == 0: self.e.wait(vm=("d", 4 * g))
        reg = self.ring(4 * (f % (4 * self.nr)) + 2 * u, 2)
        self.e(f"ds_read_b64_tr_b16 {reg}, {self.vt(t)} offset:{(g % self.NG) * 4096 + sl * 2048 + u * 1024}", ("r", f))
        self.r += 1
        return True
    def step(self):
        self.dma(); self.tr(); self.tr()
    def pump(self, force=False):
        due = force or self.e.t - self.last >= self.pace // 4
        low = self.d - self.ci < 16
        if due or low or self.r // 2 - self.ci < 4:
            if self.d // 4 - self.r // 8 >= self.NG - 1 or self.d == 4 * self.total or self.r // 2 - self.ci < 4:
                self.tr(); self.tr()
        if due or low:
            if not self.dma(): self.last = self.e.t
    def take(self):
        f = self.ci
        while self.r < 8 * (f // 4) + 2 * (f % 4) + 2:
            assert self.tr(), "stream starved"
        if ("r", f) in self.e.lg.q:
            self.e.wait(lg=("r", f))
        if f % 4 == 3: self.rdone = max(self.rdone, f // 4 + 1)
        self.ci += 1
        return self.slot(f)
    def rel(self, x): return (x[0], x[1] - self.ci) if isinstance(x, tuple) else x
    def state(self):
        return (self.d - self.ci, self.r - 2 * self.ci, self.rdone * 4 - self.ci, self.ci % (4 * self.nr),
                tuple(self.rel(x) for x in self.e.vm.q), tuple(self.rel(x) for x in self.e.lg.q))
    def skip(self, k):
        sh = lambda x: (x[0], x[1] + k) if isinstance(x, tuple) else x
        self.d += k; self.r += 2 * k; self.ci += k; self.rdone += k // 4
        self.e.vm.q = [sh(x) for x in self.e.vm.q]; self.e.lg.q = [sh(x) for x in self.e.lg.q]
```

```python
import sys
from common import *
import ka2, attn, kc
HDR = open("standalone__conformer_family_zipformer__speech.s.ref").read().split("; Override launch")[0]
def build(path, timing=False, **kw):
    a = Asm()
    a.lines += HDR.rstrip("\n").split("\n")
    a(f"; @launch kernel=ffa_kernel grid=(256,1,1) block=(256,1,1) lds={ka2.A_LDS}")
    a(f"; @launch kernel=attn_kernel grid=(256,1,1) block=(256,1,1) lds={attn.B_LDS}")
    a(f"; @launch kernel=post_kernel grid=(250,1,1) block=(256,1,1) lds={kc.C_LDS}")
    a('.amdgcn_target "amdgcn-amd-amdhsa--gfx950"')
    ka2.gen_a(a, "ffa_kernel", timing=timing)
    attn.gen_attn(a, "attn_kernel", timing=timing)
    kc.gen_c(a, "post_kernel", timing=timing)
    open(path, "w").write(a.text())
if __name__ == "__main__":
    build("standalone__conformer_family_zipformer__speech.s")
    build("full_t.s", timing=True)
    import ka
    ka.HARNESS_DBG = True
    build("full_h.s", timing=True)
```

```python
from common import *

A_LDS_H, A_LDS_B, A_LDS_ST, A_LDS_DUM = 0, 65536, 81920, 83968
A_LDS = 83968 + 2048

def gen_a(a, name, timing=False, stfl="sc1"):
    sW, sHn, sCnt = 20, 21, 22
    B = R("a", 0); RING = R("a", 128)
    ACC1 = [R("v", 16), R("v", 32)]; TMP = R("v", 48); PK = R("v", 52); T = R("v", 60)
    ACC2 = R("v", 80); HB = R("v", 112); XP = R("v", 128); X = R("v", 144)
    vW, vH, vHr, vst, vrd = "v2", "v3", "v4", "v5", "v6"
    def stamp(k):
        if timing: a(f"s_memtime s[{64+2*k}:{65+2*k}]")
    kernel_head(a, name)
    a("s_cmp_ge_u32 s2, 250")
    a(f"s_cbranch_scc1 {name}_end")
    a(f"s_load_dwordx2 s[4:5], s[0:1], {KA_WS}")
    a(f"s_load_dwordx2 s[6:7], s[0:1], {KA_X}")
    if timing:
        a("s_memrealtime s[40:41]"); stamp(0)
    wave_ids(a, sW)
    a("v_and_b32 v7, 31, v0")
    a("v_lshlrev_b32 v8, 9, v7")
    a("v_bfe_u32 v9, v0, 5, 1")
    a("v_lshl_add_u32 v8, v9, 4, v8")
    a("v_lshlrev_b32 v7, 3, v7")
    a(f"v_add_u32 {vrd}, {A_LDS_ST}, v7")
    a(f"s_lshl_b32 s23, s{sW}, 8")
    a(f"v_add_u32 {vst}, s23, {vrd}")
    a(f"s_mul_i32 s23, s{sW}, {NFA*1024}")
    a(f"s_add_u32 s23, s23, {WS_WA + 4096}")
    a(f"v_add_u32 {vW}, s23, v1")
    a("s_lshl_b32 s24, s2, 14")
    a(f"s_lshl_b32 s25, s{sW}, 12")
    a("s_add_u32 s26, s24, s25")
    a(f"s_add_u32 s27, s26, {WS_H1}")
    a("v_add_u32 v9, s27, v1")
    a(f"s_add_u32 m0, s25, {A_LDS_B}")
    a(f"s_lshl_b32 s27, s{sW}, 7")
    a("s_add_u32 s27, s27, s24")
    a("s_waitcnt lgkmcnt(0)")
    st = Stream(a, RING, 32, vW, 4, NFA)
    for f in range(4):
        a(f"global_load_lds_dwordx4 v9, s[4:5] offset:{1024*f}")
        st.other("h1")
    for _ in range(32):
        a.ext(st.load())
    srd(a, 8, 6, 8000 * 512)
    for f in range(4):
        a(f"buffer_load_dwordx4 {XP(4*f,4)}, v8, s[8:11], s27 offen offset:{32*f}")
        st.other("x")
    a(f"v_add_u32 v9, {A_LDS_B}, v1")
    a.ext(st.need("h1"))
    a("s_barrier")
    stamp(1)
    for ks in range(16):
        a(f"ds_read_b128 {B(4*ks,4)}, v9 offset:{1024*ks}")
    a("s_waitcnt lgkmcnt(0)")
    q_extra = [x for x in st.q if x == "x"]
    st.q = [x for x in st.q if x != "x"]
    gen_ff(a, name, st, B, ACC1, TMP, PK, ACC2, HB, vH, sHn, vHr, sCnt, A_LDS_H, A_LDS_DUM, sW)
    stamp(2)
    for f in range(4):
        a(f"v_permlane32_swap_b32 {XP(4*f)}, {XP(4*f+2)}")
        a(f"v_permlane32_swap_b32 {XP(4*f+1)}, {XP(4*f+3)}")
    unpack(a, X, XP, 16)
    a(f"s_mov_b32 s28, {fx(0.5/LOG2E)}")
    a(f"s_add_u32 s27, s26, {WS_X1}")
    a("v_add_u32 v8, s27, v1")
    for r in range(32):
        a(f"v_fmac_f32 {X(r)}, s28, {ACC2(r)}")
    pack(a, XP, X, 16)
    unpack(a, X, XP, 16)
    for f in range(4):
        a(f"global_store_dwordx4 v8, {XP(4*f,4)}, s[4:5] offset:{1024*f} {stfl}")
        st.other("st")
    ln_partial(a, X, T, vst, 0)
    a("s_waitcnt lgkmcnt(0)")
    a("s_barrier")
    ln_read(a, T, vrd, 0)
    a(f"s_lshl_b32 s27, s{sW}, 12")
    a("v_add_u32 v7, s27, v9")
    a("s_waitcnt lgkmcnt(0)")
    ln_finish(a, T, 1.0)
    ln_apply(a, X, X, T)
    for f in range(4):
        pack(a, ACC2.at(4*f), X.at(8*f), 4)
        a(f"ds_write_b128 v7, {ACC2(4*f,4)} offset:{1024*f}")
    a("s_waitcnt lgkmcnt(0)")
    a("s_barrier")
    for ks in range(16):
        a(f"ds_read_b128 {B(4*ks,4)}, v9 offset:{1024*ks}")
    a("s_cmp_ge_u32 s2, 125")
    a("s_cselect_b32 s27, 125, 0")
    a("s_cselect_b32 s28, 4, 0")
    a("s_sub_u32 s27, s2, s27")
    a(f"s_add_u32 s28, s28, s{sW}")
    a(f"s_mul_i32 s28, s28, {NT}")
    a("s_add_u32 s27, s27, s28")
    a("s_lshl_b32 s28, s27, 13")
    a(f"s_add_u32 s28, s28, {WS_KV + 4096}")
    a("v_add_u32 v7, s28, v1")
    a("s_lshl_b32 s28, s27, 12")
    a(f"s_add_u32 s28, s28, {WS_Q}")
    a("v_add_u32 v8, s28, v1")
    a(f"s_mov_b32 s28, {fx(LOG2E/8)}")
    stamp(3)
    def out_ops(j):
        acc = ACC1[j & 1]; m, t = j // 2, j & 1
        pk = PK if j % 2 == 0 else T
        o = []
        if m == 2:
            o += [f"v_mul_f32 {acc(r)}, s28, {acc(r)}" for r in range(16)]
        for s in range(2):
            o += [f"v_cvt_pk_bf16_f32 {pk(4*s+r)}, {acc(8*s+2*r)}, {acc(8*s+2*r+1)}" for r in range(4)]
            off = (2*t + s) * 1024
            if m == 0: o.append(("st", f"global_store_dwordx4 v7, {pk(4*s,4)}, s[4:5] offset:{off-4096} {stfl}"))
            if m == 1: o.append(("st", f"global_store_dwordx4 v7, {pk(4*s,4)}, s[4:5] offset:{off} {stfl}"))
            if m == 2: o.append(("st", f"global_store_dwordx4 v8, {pk(4*s,4)}, s[4:5] offset:{off} {stfl}"))
        return o
    def emit(ops):
        for x in ops:
            if isinstance(x, tuple):
                st.other(x[0]); a(x[1])
            else:
                a(x)
    for j in range(6):
        acc = ACC1[j & 1]
        gaps = spread(out_ops(j-1), 16, 3) if j > 0 else [[] for _ in range(16)]
        for ks in range(16):
            if j == 0:
                a(f"s_waitcnt lgkmcnt({15-ks})")
            w, A = st.take()
            a.ext(w)
            c = '0' if ks == 0 else acc(0, 16)
            if j // 2 == 1:
                a(f"v_mfma_f32_32x32x16_bf16 {acc(0,16)}, {B(4*ks,4)}, {A}, {c}")
            else:
                a(f"v_mfma_f32_32x32x16_bf16 {acc(0,16)}, {A}, {B(4*ks,4)}, {c}")
            a.ext(st.load())
            emit(gaps[ks])
    stamp(4)
    a("s_nop 7"); a("s_nop 3")
    emit(out_ops(5))
    if timing:
        tail_timing(a, sW, 0, 5)
    a(f"{name}_end:")
    a("s_endpgm")
    kernel_desc(a, name, 512, 256)

HARNESS_DBG = False
def tail_timing(a, sW, kidx, nst):
    a(f"s_memtime s[{64+2*nst}:{65+2*nst}]")
    a("s_waitcnt vmcnt(0)")
    a("s_memrealtime s[42:43]")
    a(f"s_memtime s[{66+2*nst}:{67+2*nst}]")
    a("s_waitcnt lgkmcnt(0)")
    if HARNESS_DBG and kidx < 3:
        a(f"s_load_dwordx2 s[44:45], s[0:1], {KA_DBG}")
        a("s_waitcnt lgkmcnt(0)")
        a(f"s_sub_u32 s44, s44, {512*kidx - 20*kidx}"); a("s_subb_u32 s45, s45, 0")
        a(f"s_lshl_b32 s3, s2, 2"); a(f"s_add_u32 s3, s3, s{sW}")
        a("s_cmp_lg_u32 s3, 32"); a(f"s_cbranch_scc1 dbgskip{kidx}")
        a("v_mov_b32 v3, 0"); a("v_mov_b32 v4, s40"); a("v_mov_b32 v5, s42")
        a("s_sub_u32 s46, s66, s64"); a("v_mov_b32 v6, s46"); a("s_sub_u32 s46, s68, s66"); a("v_mov_b32 v7, s46")
        a(f"s_sub_u32 s46, s{66+2*nst}, s64"); a("v_mov_b32 v8, s46")
        a("global_store_dwordx4 v3, v[4:7], s[44:45]"); a("global_store_dword v3, v8, s[44:45] offset:16")
        a(f"dbgskip{kidx}:")
        return
    if HARNESS_DBG: return
    srd_off(a, 48, 4, WS_TIM + kidx * 262144, 262144)
    for k in range(nst + 1, 0, -1):
        a(f"s_sub_u32 s{64+2*k}, s{64+2*k}, s{62+2*k}")
    a("v_mov_b32 v4, s40"); a("v_mov_b32 v5, s42")
    for k in range(1, 15):
        a(f"v_mov_b32 v{5+k}, {'s%d' % (64+2*k) if k <= nst + 1 else 0}")
    a(f"s_lshl_b32 s3, s2, 2"); a(f"s_add_u32 s3, s3, s{sW}"); a("s_lshl_b32 s3, s3, 6"); a("v_mov_b32 v3, s3")
    a("v_cmp_eq_u32 vcc, 0, v1"); a("s_and_saveexec_b64 s[52:53], vcc")
    for q in range(4):
        a(f"buffer_store_dwordx4 v[{4+4*q}:{7+4*q}], v3, s[48:51], 0 offen offset:{16*q}")
```

```python
from common import *

A_LDS_H, A_LDS_B, A_LDS_ST, A_LDS_DUM = 0, 65536, 81920, 83968
A_LDS = 83968 + 2048

def gen_a(a, name, timing=False, stfl="sc1"):
    sW, sHn, sCnt = 20, 21, 22
    B = R("a", 0); RING = R("a", 128)
    ACC1 = [R("v", 16), R("v", 32)]; TMP = R("v", 48); PK = R("v", 52); T = R("v", 60)
    ACC2 = R("v", 80); HB = R("v", 112); XP = R("v", 128); X = R("v", 144)
    vW, vH, vHr, vst, vrd = "v2", "v3", "v4", "v5", "v6"
    def stamp(k):
        if timing: a(f"s_memtime s[{64+2*k}:{65+2*k}]")
    kernel_head(a, name)
    a("s_cmp_ge_u32 s2, 250")
    a(f"s_cbranch_scc1 {name}_end")
    a(f"s_load_dwordx2 s[4:5], s[0:1], {KA_WS}")
    a(f"s_load_dwordx2 s[6:7], s[0:1], {KA_X}")
    if timing:
        a("s_memrealtime s[40:41]"); stamp(0)
    wave_ids(a, sW)
    a("v_and_b32 v7, 31, v0")
    a("v_lshlrev_b32 v8, 9, v7")
    a("v_bfe_u32 v9, v0, 5, 1")
    a("v_lshl_add_u32 v8, v9, 4, v8")
    a("v_lshlrev_b32 v7, 3, v7")
    a(f"v_add_u32 {vrd}, {A_LDS_ST}, v7")
    a(f"s_lshl_b32 s23, s{sW}, 8")
    a(f"v_add_u32 {vst}, s23, {vrd}")
    a(f"s_mul_i32 s23, s{sW}, {NFA*1024}")
    a(f"s_add_u32 s23, s23, {WS_WA + 4096}")
    a(f"v_add_u32 {vW}, s23, v1")
    a("s_lshl_b32 s24, s2, 14")
    a(f"s_lshl_b32 s25, s{sW}, 12")
    a("s_add_u32 s26, s24, s25")
    a(f"s_add_u32 s27, s26, {WS_H1}")
    a("v_add_u32 v9, s27, v1")
    a(f"s_add_u32 m0, s25, {A_LDS_B}")
    a(f"s_lshl_b32 s27, s{sW}, 7")
    a("s_add_u32 s27, s27, s24")
    a("s_waitcnt lgkmcnt(0)")
    st = Stream(a, RING, 32, vW, 4, NFA)
    for f in range(4):
        a(f"global_load_lds_dwordx4 v9, s[4:5] offset:{1024*f}")
        st.other("h1")
    for _ in range(32):
        a.ext(st.load())
    srd(a, 8, 6, 8000 * 512)
    for f in range(4):
        a(f"buffer_load_dwordx4 {XP(4*f,4)}, v8, s[8:11], s27 offen offset:{32*f}")
        st.other("x")
    a(f"v_add_u32 v9, {A_LDS_B}, v1")
    a.ext(st.need("h1"))
    a("s_barrier")
    stamp(1)
    for ks in range(16):
        a(f"ds_read_b128 {B(4*ks,4)}, v9 offset:{1024*ks}")
    a("s_waitcnt lgkmcnt(0)")
    q_extra = [x for x in st.q if x == "x"]
    st.q = [x for x in st.q if x != "x"]
    gen_ff(a, name, st, B, ACC1, TMP, PK, ACC2, HB, vH, sHn, vHr, sCnt, A_LDS_H, A_LDS_DUM, sW)
    stamp(2)
    for f in range(4):
        a(f"v_permlane32_swap_b32 {XP(4*f)}, {XP(4*f+2)}")
        a(f"v_permlane32_swap_b32 {XP(4*f+1)}, {XP(4*f+3)}")
    unpack(a, X, XP, 16)
    a(f"s_mov_b32 s28, {fx(0.5/LOG2E)}")
    a(f"s_add_u32 s27, s26, {WS_X1}")
    a("v_add_u32 v8, s27, v1")
    for r in range(32):
        a(f"v_fmac_f32 {X(r)}, s28, {ACC2(r)}")
    pack(a, XP, X, 16)
    unpack(a, X, XP, 16)
    for f in range(4):
        a(f"global_store_dwordx4 v8, {XP(4*f,4)}, s[4:5] offset:{1024*f} {stfl}")
        st.other("st")
    ln_partial(a, X, T, vst, 0)
    a("s_waitcnt lgkmcnt(0)")
    a("s_barrier")
    ln_read(a, T, vrd, 0)
    a(f"s_lshl_b32 s27, s{sW}, 12")
    a("v_add_u32 v7, s27, v9")
    a("s_waitcnt lgkmcnt(0)")
    ln_finish(a, T, 1.0)
    ln_apply(a, X, X, T)
    for f in range(4):
        pack(a, ACC2.at(4*f), X.at(8*f), 4)
        a(f"ds_write_b128 v7, {ACC2(4*f,4)} offset:{1024*f}")
    a("s_waitcnt lgkmcnt(0)")
    a("s_barrier")
    for ks in range(16):
        a(f"ds_read_b128 {B(4*ks,4)}, v9 offset:{1024*ks}")
    a("s_cmp_ge_u32 s2, 125")
    a("s_cselect_b32 s27, 125, 0")
    a("s_cselect_b32 s28, 4, 0")
    a("s_sub_u32 s27, s2, s27")
    a(f"s_add_u32 s28, s28, s{sW}")
    a(f"s_mul_i32 s28, s28, {NT}")
    a("s_add_u32 s27, s27, s28")
    a("s_lshl_b32 s28, s27, 13")
    a(f"s_add_u32 s28, s28, {WS_KV + 4096}")
    a("v_add_u32 v7, s28, v1")
    a("s_lshl_b32 s28, s27, 12")
    a(f"s_add_u32 s28, s28, {WS_Q}")
    a("v_add_u32 v8, s28, v1")
    a(f"s_mov_b32 s28, {fx(LOG2E/8)}")
    stamp(3)
    def out_ops(j):
        acc = ACC1[j & 1]; m, t = j // 2, j & 1
        pk = PK if j % 2 == 0 else T
        o = []
        if m == 2:
            o += [f"v_mul_f32 {acc(r)}, s28, {acc(r)}" for r in range(16)]
        for s in range(2):
            o += [f"v_cvt_pk_bf16_f32 {pk(4*s+r)}, {acc(8*s+2*r)}, {acc(8*s+2*r+1)}" for r in range(4)]
            off = (2*t + s) * 1024
            if m == 0: o.append(("st", f"global_store_dwordx4 v7, {pk(4*s,4)}, s[4:5] offset:{off-4096} {stfl}"))
            if m == 1: o.append(("st", f"global_store_dwordx4 v7, {pk(4*s,4)}, s[4:5] offset:{off} {stfl}"))
            if m == 2: o.append(("st", f"global_store_dwordx4 v8, {pk(4*s,4)}, s[4:5] offset:{off} {stfl}"))
        return o
    def emit(ops):
        for x in ops:
            if isinstance(x, tuple):
                st.other(x[0]); a(x[1])
            else:
                a(x)
    for j in range(6):
        acc = ACC1[j & 1]
        gaps = spread(out_ops(j-1), 16, 3) if j > 0 else [[] for _ in range(16)]
        for ks in range(16):
            if j == 0:
                a(f"s_waitcnt lgkmcnt({15-ks})")
            w, A = st.take()
            a.ext(w)
            c = '0' if ks == 0 else acc(0, 16)
            if j // 2 == 1:
                a(f"v_mfma_f32_32x32x16_bf16 {acc(0,16)}, {B(4*ks,4)}, {A}, {c}")
            else:
                a(f"v_mfma_f32_32x32x16_bf16 {acc(0,16)}, {A}, {B(4*ks,4)}, {c}")
            a.ext(st.load())
            emit(gaps[ks])
    stamp(4)
    a("s_nop 7"); a("s_nop 3")
    emit(out_ops(5))
    if timing:
        tail_timing(a, sW, 0, 5)
    a(f"{name}_end:")
    a("s_endpgm")
    kernel_desc(a, name, 512, 256)

HARNESS_DBG = False
def tail_timing(a, sW, kidx, nst):
    a(f"s_memtime s[{64+2*nst}:{65+2*nst}]")
    a("s_waitcnt vmcnt(0)")
    a("s_memrealtime s[42:43]")
    a(f"s_memtime s[{66+2*nst}:{67+2*nst}]")
    a("s_waitcnt lgkmcnt(0)")
    if HARNESS_DBG and kidx < 3:
        a(f"s_load_dwordx2 s[44:45], s[0:1], {KA_DBG}")
        a("s_waitcnt lgkmcnt(0)")
        a(f"s_lshl_b32 s3, s2, 2"); a(f"s_add_u32 s3, s3, s{sW}")
        a("s_cmp_lg_u32 s3, 32"); a(f"s_cbranch_scc1 dbgskip{kidx}")
        a(f"v_mov_b32 v3, {WS_TIM + 20*kidx}"); a("v_mov_b32 v4, s40"); a("v_mov_b32 v5, s42")
        a("s_sub_u32 s46, s66, s64"); a("v_mov_b32 v6, s46"); a("s_sub_u32 s46, s68, s66"); a("v_mov_b32 v7, s46")
        a(f"s_sub_u32 s46, s{66+2*nst}, s64"); a("v_mov_b32 v8, s46")
        a("global_store_dwordx4 v3, v[4:7], s[4:5] sc1"); a("global_store_dword v3, v8, s[4:5] offset:16 sc1")
        if kidx == 2:
            a("s_waitcnt vmcnt(0)")
            a("v_lshrrev_b32 v9, 2, v1"); a(f"v_add_u32 v3, {WS_TIM}, v9")
            a("global_load_dword v4, v3, s[4:5] sc1"); a("s_waitcnt vmcnt(0)")
            a("global_store_dword v9, v4, s[44:45]")
        a(f"dbgskip{kidx}:")
        return
    if HARNESS_DBG: return
    srd_off(a, 48, 4, WS_TIM + kidx * 262144, 262144)
    for k in range(nst + 1, 0, -1):
        a(f"s_sub_u32 s{64+2*k}, s{64+2*k}, s{62+2*k}")
    a("v_mov_b32 v4, s40"); a("v_mov_b32 v5, s42")
    for k in range(1, 15):
        a(f"v_mov_b32 v{5+k}, {'s%d' % (64+2*k) if k <= nst + 1 else 0}")
    a(f"s_lshl_b32 s3, s2, 2"); a(f"s_add_u32 s3, s3, s{sW}"); a("s_lshl_b32 s3, s3, 6"); a("v_mov_b32 v3, s3")
    a("v_cmp_eq_u32 vcc, 0, v1"); a("s_and_saveexec_b64 s[52:53], vcc")
    for q in range(4):
        a(f"buffer_store_dwordx4 v[{4+4*q}:{7+4*q}], v3, s[48:51], 0 offen offset:{16*q}")
```

```python
from asmlib import *
from layout import *
from ka import tail_timing

def gen_attn(a, name, timing=False, dbg="", store_fl="sc1", warm=None):
    if warm is None: warm = not os.environ.get('NOWARM')
    if True:
        pass
    NB = 2
    ldfl = (" nt" if "ldnt" in dbg else "") + (" sc1" if "ldsc1" in dbg else "") + (" sc0" if "ldsc0" in dbg else "")
    O = R("a", 0)
    Q = R("a", 128)
    KB = [R("a", 192), R("a", 208)]
    VB = [R("a", 224), R("a", 240)]
    S = [R("v", 16 + 16*i) for i in range(4)]
    P = [R("v", 80), R("v", 88)]
    NM = R("v", 96)
    L = R("v", 160)
    SEL = R("v", 176)
    T = R("v", 184)
    vl16 = "v1"
    vko = "v2"
    sQ, sAT = 8, 16
    sKV = 12
    sW, sBH, sQB = 20, 21, 22
    sKo, sBeg, sEnd, sCnt, sN, sPass, sStart = 23, 25, 26, 27, 28, 29, 30

    def stamp(k):
        if timing:
            a(f"s_memtime s[{64+2*k}:{65+2*k}]")

    kernel_head(a, name)
    a("s_cmp_ge_u32 s2, 256")
    a(f"s_cbranch_scc1 {name}_end")
    a(f"s_load_dwordx2 s[4:5], s[0:1], {KA_WS}")
    a(f"s_load_dwordx2 s[6:7], s[0:1], {KA_OUT}")
    if timing:
        a("s_memrealtime s[40:41]")
        stamp(0)
    a("v_lshrrev_b32 v2, 6, v0")
    a("v_and_b32 v1, 63, v0")
    a(f"v_readfirstlane_b32 s{sW}, v2")
    a("v_lshlrev_b32 v1, 4, v1")
    a(f"s_and_b32 s{sBH}, s2, 7")
    a(f"s_lshr_b32 s{sQB}, s2, 3")
    a(f"s_mul_i32 s31, s{sBH}, {Q_BH}")
    a(f"s_mul_i32 s32, s{sBH}, {KV_BH}")
    a(f"s_add_u32 s32, s32, {WS_KV}")
    a(f"s_mov_b32 s{sN}, 31")
    a(f"s_lshl_b32 s{sBeg}, s{sW}, 13")
    a(f"s_add_u32 s{sBeg}, s{sBeg}, 4096")
    a(f"s_lshl_b32 s{sEnd}, s{sN}, 15")
    a(f"s_add_u32 s{sEnd}, s{sEnd}, s{sBeg}")
    if ROT:
        a(f"s_and_b32 s{sStart}, s{sQB}, {ROT-1}")
        a(f"s_mul_i32 s{sStart}, s{sStart}, {32768 * (32 // ROT)}")
        a(f"s_add_u32 s{sStart}, s{sStart}, s{sBeg}")
    else:
        a(f"s_mov_b32 s{sStart}, s{sBeg}")
    a(f"s_lshl_b32 s33, s{sQB}, 14")
    a(f"s_sub_u32 s{sN}, s{sN}, 1")
    a(f"s_mov_b32 s{sPass}, 0")
    a("s_waitcnt lgkmcnt(0)")
    a(f"s_add_u32 s{sQ}, s4, s31"); a(f"s_addc_u32 s{sQ+1}, s5, 0"); a(f"s_mov_b32 s{sQ+2}, {Q_BH}"); a(f"s_mov_b32 s{sQ+3}, 0x20000")
    a(f"s_add_u32 s{sKV}, s4, s32"); a(f"s_addc_u32 s{sKV+1}, s5, 0")

    T124 = 124 * 8192 + 4096
    def adv(last=None):
        o = [f"s_add_u32 s{sKo}, s{sKo}, 32768", f"s_cmp_ge_u32 s{sKo}, s{sEnd}", f"s_cselect_b32 s{sKo}, s{sBeg}, s{sKo}"]
        if last is not None:
            o += [f"s_cmp_eq_u32 s{sCnt}, {last}", f"s_cselect_b32 s{sKo}, {T124}, s{sKo}"]
        return o + [f"v_add_u32 {vko}, s{sKo}, {vl16}"]
    def loadK(b):
        return [f"global_load_dwordx4 {KB[b](4*f,4)}, {vko}, s[{sKV}:{sKV+1}] offset:{1024*f-4096}{ldfl}" for f in range(4)]
    def loadV(b):
        return [f"global_load_dwordx4 {VB[b](4*f,4)}, {vko}, s[{sKV}:{sKV+1}] offset:{1024*f}{ldfl}" for f in range(4)]
    def qk(i, kb, dst, c):
        out = []
        for ds in range(4):
            cc = c if ds == 0 else dst(0, 16)
            out.append(f"v_mfma_f32_32x32x16_bf16 {dst(0,16)}, {KB[kb](4*ds,4)}, {Q(16*i+4*ds,4)}, {cc}")
        return out
    def pv(i, vb, p):
        out = []
        for ks in range(2):
            for dt in range(2):
                o = O(32*i+16*dt, 16)
                if "swappv" in dbg:
                    out.append(f"v_mfma_f32_32x32x16_bf16 {o}, {p(4*ks,4)}, {VB[vb](4*(2*dt+ks),4)}, {o}")
                else:
                    out.append(f"v_mfma_f32_32x32x16_bf16 {o}, {VB[vb](4*(2*dt+ks),4)}, {p(4*ks,4)}, {o}")
        return out
    def summ(i, p):
        return f"v_smfmac_f32_16x16x64_bf16 {L(4*i,4)}, {SEL(0,4)}, {p(0,8)}, {SEL(4)}"

    a(f"s_lshl_b32 s34, s{sW}, 12")
    a("s_add_u32 s33, s33, s34")
    a("s_add_u32 m0, s34, 8192")
    a(f"s_mov_b32 s{sKo}, s{sStart}")
    a(f"v_add_u32 {vko}, s{sKo}, {vl16}")
    for ds in range(4):
        a(f"buffer_load_dwordx4 {vl16}, s[{sQ}:{sQ+3}], s33 offen offset:{1024*ds} lds")
    a.ext(loadK(0))
    def rest_loads():
        a.ext(loadV(0)); a.ext(adv()); a.ext(loadK(1))
    srd_off(a, sAT, 4, WS_ATT, ATT_SZ)
    if warm:
        a(f"s_lshl_b32 s35, s{sQB}, 2"); a(f"s_add_u32 s35, s35, s{sW}")
        a(f"s_mul_i32 s36, s35, 12928"); a(f"s_add_u32 s36, s36, {WS_WC}")
        a("s_add_u32 s44, s4, s36"); a("s_addc_u32 s45, s5, 0")
        a(f"s_lshl_b32 s36, s{sBH}, 7"); a("s_add_u32 s36, s36, s35"); a("s_lshl_b32 s36, s36, 12")
        a("s_min_u32 s37, s36, 4091904"); a("s_add_u32 s52, s6, s37"); a("s_addc_u32 s53, s7, 0")
        a(f"s_add_u32 s36, s36, {WS_X1}")
        a("s_add_u32 s46, s4, s36"); a("s_addc_u32 s47, s5, 0")
        a("s_getpc_b64 s[50:51]")
        a(f"{name}_pc:")
        a(f"s_add_u32 s50, s50, post_kernel-{name}_pc"); a("s_addc_u32 s51, s51, 0")
        a("s_lshl_b32 s35, s35, 8"); a("s_min_u32 s35, s35, (post_kernel_end-post_kernel-196)&0xffffff80")
    a("v_lshrrev_b32 v3, 4, v1")
    a("v_and_b32 v4, 6, v3")
    a("v_mov_b32 v5, 0x3f803f80")
    a("v_cmp_eq_u32 vcc, 0, v4")
    a("s_nop 1")
    for r in range(2):
        a(f"v_cndmask_b32 {SEL(r)}, 0, v5, vcc")
    a("v_cmp_eq_u32 vcc, 4, v4")
    a("s_nop 1")
    for r in range(2, 4):
        a(f"v_cndmask_b32 {SEL(r)}, 0, v5, vcc")
    a("v_and_b32 v4, 1, v3")
    a("v_cmp_eq_u32 vcc, 0, v4")
    a("v_mov_b32 v5, 0x44444444")
    a("v_mov_b32 v6, 0xeeeeeeee")
    a(f"v_cndmask_b32 {SEL(4)}, v6, v5, vcc")
    def zero_state():
        for r in range(128):
            a(f"v_accvgpr_write_b32 {O(r)}, 0")
        for r in range(16):
            a(f"v_accvgpr_write_b32 {VB[1](r)}, 0")
        for r in range(8):
            a(f"v_mov_b32 {P[1](r)}, 0")
        for r in range(16):
            a(f"v_mov_b32 {L(r)}, 0")
        a(f"v_mov_b32 {S[3](14)}, 0")
        a(f"v_mov_b32 {S[3](15)}, 0")
        a(f"s_mov_b32 s{sCnt}, s{sN}")
        a("s_mov_b32 s48, 0"); a("s_mov_b32 s49, 0")
    zero_state()
    rest_loads()

    stamp(1)
    def red(i, src):
        t = T(i)
        o = [f"v_max3_f32 {t}, {src(0)}, {src(1)}, {src(2)}"]
        for j in range(3, 15, 2):
            o.append(f"v_max3_f32 {t}, {t}, {src(j)}, {src(j+1)}")
        o.append(f"v_max_f32 {t}, {t}, {src(15)}")
        return o
    def fin(i):
        o = [f"v_mov_b32 {T(4+i)}, {T(i)}", "s_nop 1", f"v_permlane32_swap_b32 {T(i)}, {T(4+i)}",
             f"v_max_f32 {T(i)}, {T(i)}, {T(4+i)}"]
        o += [f"v_sub_f32 {NM(16*i+r)}, 0, {T(i)}" for r in range(16)]
        return o
    a("v_add_u32 v3, s34, v1")
    a("v_lshrrev_b32 v4, 2, v1")
    a(f"s_lshl_b32 s36, s{sW}, 8")
    a("v_add_u32 v5, s36, v4")
    a("s_waitcnt vmcnt(12)")
    for ds in range(4):
        a(f"ds_read_b128 {S[1](4*ds,4)}, v3 offset:{8192 + 1024*ds}")
    a("s_waitcnt vmcnt(8) lgkmcnt(0)")
    for ds in range(4):
        a(f"v_mfma_f32_32x32x16_bf16 {S[0](0,16)}, {KB[0](4*ds,4)}, {S[1](4*ds,4)}, {'0' if ds == 0 else S[0](0,16)}")
    a("s_barrier")
    for i in range(4):
        for ds in range(4):
            a(f"ds_read_b128 {Q(16*i+4*ds,4)}, v1 offset:{8192 + 4096*i + 1024*ds}")
    a.ext(red(0, S[0]))
    a(f"v_mov_b32 {T(4)}, {T(0)}"); a("s_nop 1"); a(f"v_permlane32_swap_b32 {T(0)}, {T(4)}")
    a(f"v_max_f32 {T(0)}, {T(0)}, {T(4)}")
    a(f"ds_write_b32 v5, {T(0)}")
    a("s_waitcnt lgkmcnt(0)")
    a("s_barrier")
    for i in range(4):
        a(f"ds_read_b32 {T(i)}, v4 offset:{256*i}")
    stamp(2)
    a("s_waitcnt lgkmcnt(3)")
    a.ext([f"v_sub_f32 {NM(r)}, 0, {T(0)}" for r in range(16)])
    a("s_waitcnt lgkmcnt(0)")
    a.ext(interleave(qk(0, 0, S[0], NM(0, 16)), [f"v_sub_f32 {NM(16*i+r)}, 0, {T(i)}" for i in range(1, 4) for r in range(16)]))
    if warm:
        a("s_load_dwordx2 s[60:61], s[50:51], s35 offset:60"); a("s_load_dwordx2 s[60:61], s[50:51], s35 offset:188"); a("s_load_dwordx2 s[60:61], s[46:47], 4028"); a("s_load_dwordx2 s[60:61], s[52:53], 4028")
    a(f"s_branch {name}_loop")

    a(f"{name}_pass:")
    a(f"s_mov_b32 s{sKo}, s{sStart}")
    a(f"v_add_u32 {vko}, s{sKo}, {vl16}")
    a.ext(loadK(0)); rest_loads(); zero_state()
    a("s_waitcnt vmcnt(8)")
    a.ext(qk(0, 0, S[0], NM(0, 16)))
    a("s_nop 7"); a("s_nop 3")

    a(".p2align 6")
    a(f"{name}_loop:")
    if timing:
        pass
    for tb in range(NB):
        for i in range(4):
            kb_next = tb if i < 3 else (tb + 1) % NB
            vb_prev = tb if i > 0 else (tb - 1) % NB
            ip, inx = (i - 1) & 3, (i + 1) & 3
            mains = qk(inx, kb_next, S[inx], NM(16*inx, 16)) + pv(ip, vb_prev, P[ip & 1])
            s, p = S[i], P[i & 1]
            early = [[] for _ in range(9)]
            pre = []
            if i == 3:
                pre.append("s_waitcnt vmcnt(4)")
                for f, l in enumerate(loadK(tb)): early[1+f].append(l)
            if i == 1:
                for f, l in enumerate(loadV((tb - 1) % NB)): early[f].append(l)
                early[3].append("s_waitcnt vmcnt(8)")
            if i == 3 and tb == 0: post = [f"s_cmp_lt_i32 s{sCnt}, 0"]
            else: post = []
            if "noload" in dbg:
                early = [[] for _ in range(9)]; pre = []
            if i == 2:
                for k, x in enumerate(adv(1)): early[k].append(x)
                early[8].append(f"s_sub_u32 s{sCnt}, s{sCnt}, 1")
            if i == 0 and warm:
                early[0].append("s_load_dwordx2 s[60:61], s[46:47], s49 offset:60")
                early[4].append("s_load_dwordx2 s[60:61], s[52:53], s49 offset:60")
                early[5].append("s_add_u32 s49, s49, 128")
            if warm:
                early[7 if i else 2].append(f"s_load_dwordx2 s[60:61], s[44:45], s48 offset:{128*i+60}")
                if i == 3: early[8].append("s_add_u32 s48, s48, 512")
            a.ext(pre)
            for k in range(8):
                a(mains[k])
                a.ext(early[k])
                if "novalu" not in dbg:
                    a(f"v_exp_f32 {s(2*k)}, {s(2*k)}")
                    a(f"v_exp_f32 {s(2*k+1)}, {s(2*k+1)}")
                    if k == 0:
                        a(f"v_cvt_pk_bf16_f32 {P[ip & 1](7)}, {S[ip](14)}, {S[ip](15)}")
                    else:
                        a(f"v_cvt_pk_bf16_f32 {p(k-1)}, {s(2*k-2)}, {s(2*k-1)}")
                if k == SMF_POS and "nosum" not in dbg:
                    a(summ(ip, P[ip & 1]))
                    a.ext(early[8] + post)
                elif k == SMF_POS:
                    a.ext(early[8])
        if tb < NB - 1:
            a(f"s_cbranch_scc1 {name}_exit{tb}")
        else:
            a(f"s_branch {name}_loop")
    a(f"{name}_exit0:")
    a(f"v_cvt_pk_bf16_f32 {P[1](7)}, {S[3](14)}, {S[3](15)}")
    a(f"s_lshl_b32 s34, s{sW}, 13")
    a("v_add_u32 v5, s34, v1")
    a("v_add_u32 v5, 8192, v5")
    a("v_add_u32 v6, 65536, v5")
    for w in range(4):
        if w < 3:
            a(f"s_cmp_lg_u32 s{sW}, {w}")
            a(f"s_cbranch_scc1 {name}_tail{w+1}")
        wr = [f"ds_write_b128 {'v5' if i < 2 else 'v6'}, {O(32*i+4*r,4)} offset:{(i&1)*32768 + r*1024}" for i in range(4) if i != w for r in range(8)]
        sx = S[0] if w == 0 else S[1]
        m1 = ([] if w == 0 else qk(w, 1, sx, NM(16*w, 16))) + pv(3, 0, P[1]) + [summ(3, P[1])]
        n1 = 16 if w else 8
        a.ext(interleave(m1, wr[:n1])); wr = wr[n1:]
        va = []
        for k in range(8):
            va += [f"v_exp_f32 {sx(2*k)}, {sx(2*k)}", f"v_exp_f32 {sx(2*k+1)}, {sx(2*k+1)}"]
            if k: va.append(f"v_cvt_pk_bf16_f32 {P[0](k-1)}, {sx(2*k-2)}, {sx(2*k-1)}")
        if w == 0:
            a.ext(interleave(va, wr[:8])); wr = wr[8:]
        else:
            a.ext(va[:11]); a.ext(interleave(va[11:], wr[:4])); wr = wr[4:]
        a.ext(["s_nop 0", f"v_cvt_pk_bf16_f32 {P[0](7)}, {sx(14)}, {sx(15)}", "s_waitcnt vmcnt(4)"])
        a.ext(interleave(pv(w, 1, P[0]) + [summ(w, P[0])], wr))
        if w < 3:
            a(f"s_branch {name}_done")
            a(f"{name}_tail{w+1}:")
    a(f"{name}_done:")
    stamp(3)
    a("s_nop 7"); a("s_nop 1")
    for i in range(4):
        a(f"v_add_f32 {T(8+i)}, {L(4*i)}, {L(4*i+1)}")
    a(f"v_add_f32 {T(17)}, {T(8)}, {T(9)}")
    a(f"v_add_f32 {T(18)}, {T(10)}, {T(11)}")
    a(f"v_add_f32 {T(17)}, {T(17)}, {T(18)}")
    a("v_mov_b32 v3, 0x5f800000")
    a(f"v_cmp_nlt_f32 vcc, {T(17)}, v3")
    a(f"s_cmp_lg_u32 s{sPass}, {0 if not dbg else 1}")
    a(f"s_cbranch_scc1 {name}_fin")
    a("s_nop 3")
    a(f"s_cbranch_vccz {name}_fin")
    a(f"s_mov_b32 s{sPass}, 1")
    a("s_waitcnt vmcnt(0)")
    a(f"s_mov_b32 s{sKo}, s{sStart}")
    a(f"v_add_u32 {vko}, s{sKo}, {vl16}")
    a(f"s_mov_b32 s{sCnt}, s{sN}")
    for i in range(4):
        a(f"v_mov_b32 {T(i)}, 0xff800000")
    a(f"{name}_mx:")
    a.ext(loadK(0)); a.ext(adv(0))
    a("s_waitcnt vmcnt(0)")
    for i in range(4):
        a.ext(qk(i, 0, NM.at(16*i), "0"))
    a("s_nop 7"); a("s_nop 7")
    for i in range(4):
        for j in range(0, 16, 2):
            a(f"v_max3_f32 {T(i)}, {T(i)}, {NM(16*i+j)}, {NM(16*i+j+1)}")
    a(f"s_sub_u32 s{sCnt}, s{sCnt}, 1")
    a(f"s_cmp_ge_i32 s{sCnt}, -1")
    a(f"s_cbranch_scc1 {name}_mx")
    for i in range(4):
        a.ext(fin(i))
    a(f"s_branch {name}_pass")

    a(f"{name}_fin:")
    a("v_lshrrev_b32 v3, 2, v1")
    a(f"s_lshl_b32 s34, s{sW}, 11")
    a("v_add_u32 v4, s34, v3")
    for i in range(4):
        a(f"ds_write_b32 v4, {NM(16*i)} offset:{i*512}")
        a(f"ds_write_b32 v4, {T(8+i)} offset:{i*512+256}")
    for i in range(4):
        a(f"s_cmp_lg_u32 s{sW}, {i}")
        a(f"s_cbranch_scc1 {name}_skipr{i}")
        for r in range(32):
            a(f"v_accvgpr_read_b32 v{16+r}, {O(32*i+r)}")
        a(f"{name}_skipr{i}:")
    a(f"s_lshl_b32 s34, s{sW}, 9")
    a("v_add_u32 v4, s34, v3")
    for k in range(1, 4):
        a(f"s_add_u32 s35, s{sW}, {k}")
        a("s_and_b32 s35, s35, 3")
        a(f"s_lshl_b32 s36, s{sW}, 2")
        a("s_add_u32 s35, s35, s36")
        a("s_lshl_b32 s35, s35, 13")
        a("s_add_u32 s35, s35, 8192")
        a(f"v_add_u32 v{6+k}, s35, v1")
    a("s_waitcnt lgkmcnt(0)")
    stamp(4)
    a("s_barrier")
    for w in range(4):
        a(f"ds_read_b32 {T(w)}, v4 offset:{w*2048}")
        a(f"ds_read_b32 {T(4+w)}, v4 offset:{w*2048+256}")
    def rd(k):
        return [f"ds_read_b128 v[{32+32*k+4*r}:{32+32*k+4*r+3}], v{6+k} offset:{r*1024}" for r in range(8)]
    a.ext(rd(1)[:7])
    a("s_waitcnt lgkmcnt(7)")
    a(f"v_min3_f32 {T(8)}, {T(0)}, {T(1)}, {T(2)}")
    a(f"v_min_f32 {T(8)}, {T(8)}, {T(3)}")
    for w in range(4):
        a(f"v_sub_f32 {T(w)}, {T(8)}, {T(w)}")
    for w in range(4):
        a(f"v_exp_f32 {T(w)}, {T(w)}")
    a.ext(rd(1)[7:] + rd(2)[:7])
    a(f"v_mul_f32 {T(9)}, {T(0)}, {T(4)}")
    for w in range(1, 4):
        a(f"v_fmac_f32 {T(9)}, {T(w)}, {T(4+w)}")
    a(f"v_rcp_f32 {T(9)}, {T(9)}")
    a("s_nop 0")
    for w in range(4):
        a(f"v_mul_f32 {T(w)}, {T(w)}, {T(9)}")
    for w in range(4):
        a(f"s_cmp_lg_u32 s{sW}, {w}")
        a(f"s_cbranch_scc1 {name}_skipg{w}")
        for k in range(4):
            a(f"v_mov_b32 {T(12+k)}, {T((w+k)&3)}")
        a(f"{name}_skipg{w}:")
    for r in range(0, 32, 2):
        a(f"v_pk_mul_f32 v[{16+r}:{17+r}], v[{16+r}:{17+r}], {T(12,2)} op_sel_hi:[1,0]")
    a("s_waitcnt lgkmcnt(7)")
    a.ext(rd(2)[7:] + rd(3)[:7])
    for r in range(0, 32, 2):
        a(f"v_pk_fma_f32 v[{16+r}:{17+r}], v[{64+r}:{65+r}], {T(12,2)}, v[{16+r}:{17+r}] op_sel:[0,1,0] op_sel_hi:[1,1,1]")
    a("s_waitcnt lgkmcnt(7)")
    a.ext(rd(3)[7:])
    for r in range(0, 32, 2):
        a(f"v_pk_fma_f32 v[{16+r}:{17+r}], v[{96+r}:{97+r}], {T(14,2)}, v[{16+r}:{17+r}] op_sel_hi:[1,0,1]")
    a("s_waitcnt lgkmcnt(0)")
    a(f"s_lshl_b32 s34, s{sQB}, 2")
    a(f"s_add_u32 s34, s34, s{sW}")
    a(f"s_cmp_ge_u32 s34, {NT}")
    a(f"s_cbranch_scc1 {name}_nost")
    a(f"s_lshr_b32 s35, s{sBH}, 2")
    a(f"s_mul_i32 s35, s35, {NT}")
    a("s_add_u32 s34, s34, s35")
    a("s_lshl_b32 s34, s34, 14")
    a(f"s_and_b32 s35, s{sBH}, 3")
    a("s_lshl_b32 s35, s35, 12")
    a("s_add_u32 s34, s34, s35")
    for f in range(4):
        for r in range(8*f, 8*f+8, 2):
            a(f"v_pk_fma_f32 v[{16+r}:{17+r}], v[{128+r}:{129+r}], {T(14,2)}, v[{16+r}:{17+r}] op_sel:[0,1,0] op_sel_hi:[1,1,1]")
        for r in range(4):
            a(f"v_cvt_pk_bf16_f32 v{48+4*f+r}, v{16+8*f+2*r}, v{17+8*f+2*r}")
        a(f"buffer_store_dwordx4 v[{48+4*f}:{51+4*f}], v1, s[{sAT}:{sAT+3}], s34 offen offset:{1024*f} {store_fl}")
    a(f"{name}_nost:")
    if timing:
        tail_timing(a, sW, 1, 5)
    a(f"{name}_end:")
    a("s_endpgm")
    kernel_desc(a, name, 512, 256)

SMF_POS = 7
import os
ROT = int(os.environ.get('ROT', 0))
B_LDS = 8192 + 131072
if __name__ == "__main__":
    import sys
    a = Asm()
    dbg = sys.argv[2] if len(sys.argv) > 2 else ""
    for t in dbg.split("_"):
        if t.startswith("smf"): SMF_POS = int(t[3:])
    a(f"; @launch kernel=attn_kernel grid=({sys.argv[3] if len(sys.argv) > 3 else 256},1,1) block=(256,1,1) lds={8192+131072}")
    a('.amdgcn_target "amdgcn-amd-amdhsa--gfx950"')
    gen_attn(a, "attn_kernel", timing=True, dbg=dbg)
    open(sys.argv[1], "w").write(a.text())

B_LDS = 8192 + 131072
```

```python
from common import *
from sched import *

def mm(e, acc, A, Bop, first):
    e(f"v_mfma_f32_32x32x16_bf16 {acc(0,16)}, {A}, {Bop}, {'0' if first else acc(0,16)}")

def ff_split(e, st, B, ACC, TMP, PK, HB, vH, lds_h, stamp, own_first=None, p1_hooks=None, send_fill=None, p4_hooks=None, p3_hook=None):
    def a1(cp, tt, t): return ACC.at(64*cp + 32*tt + 16*t)
    def a2(tt, t): return ACC.at(32*tt + 16*t)
    def hoff(cp, w, t, s, tt): return lds_h + (cp*16 + w*4 + 2*t + s) * 2048 + tt * 1024
    def silu_all(cp):
        o = []
        for t in range(2):
            for tt in range(2):
                ops = silu_ops(a1(cp, tt, t), TMP, PK)
                ops.insert(36, f"ds_write_b128 {vH}, {PK(0,4)} offset:{hoff(cp,0,t,0,tt)}")
                ops.append(f"ds_write_b128 {vH}, {PK(4,4)} offset:{hoff(cp,0,t,1,tt)}")
                o += ops
        return o
    if own_first:
        f0 = st.ci
        for tt in range(2):
            for ks in range(16):
                e.wait(lg=("b", tt, ks))
                for t in range(2):
                    A = st.acquire(f0 + 2*ks + t)
                    mm(e, a1(0, tt, t), A, B(64*tt+4*ks, 4), ks == 0)
                    if tt == 1: st.release()
                    st.pump()
                    if tt == 0 and 2*ks + t in p1_hooks: p1_hooks[2*ks + t]()
            if tt == 0: own_first()
    else:
        for ks in range(16):
            e.wait(lg=("b", 1, ks))
            for t in range(2):
                A = st.acquire(st.ci)
                for tt in range(2):
                    mm(e, a1(0, tt, t), A, B(64*tt+4*ks, 4), ks == 0)
                    if tt == 1: st.release()
                    st.pump()
    stamp()
    gaps = spread(silu_all(0), 64, 3); k = 0
    for ks in range(16):
        for t in range(2):
            A = st.acquire(st.ci)
            for tt in range(2):
                mm(e, a1(1, tt, t), A, B(64*tt+4*ks, 4), ks == 0)
                if tt == 1: st.release()
                st.pump()
                e.ext(gaps[k]); k += 1
    stamp()
    e.wait_lg0(16); e("s_barrier")
    def hread(kk, tt, slot):
        cp, w, t, s = kk >> 4, (kk >> 2) & 3, (kk >> 1) & 1, kk & 1
        return (f"ds_read_b128 {HB(4*slot,4)}, v1 offset:{hoff(cp,w,t,s,tt)}", ("h", kk, tt))
    if p3_hook: p3_hook()
    gaps = spread(silu_all(1), 64, 3); k = 0
    e.ext([hread(kk, tt, 2*(kk % 3) + tt) for kk in range(2) for tt in range(2)])
    for kk in range(16):
        e.wait(lg=("h", kk, 1))
        for t in range(2):
            A = st.acquire(st.ci)
            for tt in range(2):
                mm(e, a2(tt, t), A, HB(8*(kk % 3) + 4*tt, 4), kk == 0)
                if tt == 1: st.release()
                if tt == 0 and kk + 2 < 16: e.ext([hread(kk+2, t, 2*((kk+2) % 3) + t)])
                st.pump()
                e.ext(gaps[k]); k += 1
    stamp()
    e.wait_lg0(16); e("s_barrier")
    st.ahead = True; st.last = e.t
    f0 = st.ci
    seq = [(tt, kk) for tt in (1, 0) for kk in range(16, 32)]
    for i in range(4): e.ext([hread(seq[i][1], seq[i][0], i % 6)])
    gaps = None
    for i, (tt, kk) in enumerate(seq):
        if i == 16:
            stamp()
        e.wait(lg=("h", kk, tt))
        for t in range(2):
            A = st.acquire(f0 + 2*(kk-16) + t)
            mm(e, a2(tt, t), A, HB(4*(i % 6), 4), False)
            if t == 0 and i + 4 < 32: e.ext([hread(seq[i+4][1], seq[i+4][0], (i+4) % 6)])
            if tt == 0: st.release()
            if i >= 16:
                if gaps is None:
                    sf = send_fill()
                    gaps = spread(sf, 3 + (len(sf) + 4) // 5, 3) + [[] for _ in range(32)]
                g = gaps[2*(i-16) + t]
                if not g: st.pump()
                e.ext(g)
                if 2*(i-16) + t in p4_hooks: p4_hooks[2*(i-16) + t]()
            else:
                st.pump()
    stamp()
    return a2
```

```python
from common import *
from sched import *
from ka import tail_timing
from ffs import *

A_LDS_H = 0
A_LDS_RING = 65536
A_LDS_ST = 147456
A_LDS = 147456 + 3072
SPIN = 400000
import os
FINE = bool(os.environ.get('FINE'))
PRET = int(os.environ.get('PRET', 0))
TLB = int(os.environ.get('TLB', 0))
XST = int(os.environ.get('XST', 0))

def csubs():
    o = [(KA_WO, 0, 512, 0, NFC, 2, 1)]
    for sel in range(2):
        o.append((KA_PW1, 512 * sel, 1024, 32 + sel, NFC, 2, 32))
    o.append((KA_PW2, 0, 512, 114, NFC, 2, 1))
    for q in range(4):
        o.append((KA_FF2A, 512 * q, 2048, 146 + 128 * (q >> 1) + 32 * (q & 1), NFC, 2, 1))
    for q in range(4):
        o.append((KA_FF2B, q * 256 * 512, 512, 146 + 128 * (q >> 1) + 64 + 32 * (q & 1), NFC, 2, 1))
    return o

def tr_lane_regs(a, vt, sring, tmp):
    a(f"v_bfe_u32 {tmp(0)}, v0, 2, 2")
    a(f"v_bfe_u32 {tmp(1)}, v0, 5, 1")
    a(f"v_lshl_add_u32 {tmp(1)}, {tmp(1)}, 2, {tmp(0)}")
    a(f"v_lshlrev_b32 {tmp(1)}, 7, {tmp(1)}")
    a(f"v_lshrrev_b32 {tmp(0)}, 1, {tmp(0)}")
    a(f"v_lshl_add_u32 {tmp(1)}, {tmp(0)}, 6, {tmp(1)}")
    a(f"v_bfe_u32 {tmp(0)}, v0, 4, 1")
    a(f"v_lshl_add_u32 {tmp(1)}, {tmp(0)}, 5, {tmp(1)}")
    a(f"v_and_b32 {tmp(0)}, 3, v0")
    a(f"v_lshl_add_u32 {tmp(1)}, {tmp(0)}, 3, {tmp(1)}")
    a(f"v_add_u32 {vt(0)}, s{sring}, {tmp(1)}")
    a(f"v_xor_b32 {vt(1)}, 64, {vt(0)}")

def dma_lane_regs(vrow, vchk):
    return [f"v_bfe_u32 {vrow}, v0, 3, 3",
            f"v_bfe_u32 {vchk}, v0, 4, 1",
            f"v_lshlrev_b32 {vchk}, 2, {vchk}",
            f"v_xor_b32 {vchk}, {vchk}, v0",
            f"v_and_b32 {vchk}, 7, {vchk}",
            f"v_lshlrev_b32 {vchk}, 4, {vchk}"]

def voff_setup(voff, vrow, vchk, rs):
    sh = {512: 9, 1024: 10, 2048: 11}
    o = [f"v_lshl_add_u32 {voff(0)}, {vrow}, {sh[rs]}, {vchk}"] if rs in sh else \
        [f"v_mul_u32_u24 {voff(0)}, {rs}, {vrow}", f"v_add_u32 {voff(0)}, {voff(0)}, {vchk}"]
    for i in range(1, 4):
        o.append(f"v_add_u32 {voff(i)}, {i * (8 * rs - 1024)}, {voff(0)}")
    return o

def gen_a(a, name, timing=False, stfl="sc1", code_kb=0):
    e = Em(a, name)
    sW, sRing, sB = 20, 21, 22
    sTile, sPart, sSide, sNonce, sReq = 24, 25, 26, 27, 28
    sW1a, sW1b, sWq = 8, 10, 12
    B = R("a", 0); RING = R("a", 128)
    VO = R("v", 2); VT = R("v", 6)
    vst, vrd, vH, vrow, vchk = "v8", "v9", "v10", "v11", "v12"
    ACC = R("v", 16)
    TMP = R("v", 144); PK = R("v", 148); HB = R("v", 156); XP = R("v", 180); T = R("v", 196); T2 = R("v", 204)
    M = R("v", 212)
    stc = [0]
    def stamp(k=None):
        if timing:
            a(f"s_memtime s[{64+2*stc[0]}:{65+2*stc[0]}]"); stc[0] += 1
    kernel_head(a, name)
    e("s_cmp_ge_u32 s2, 256")
    e(f"s_cbranch_scc1 {name}_end")
    e(f"s_load_dwordx4 s[4:7], s[0:1], {KA_X}")
    e(f"s_load_dwordx4 s[8:11], s[0:1], {KA_FF1B}")
    e(f"s_load_dwordx2 s[14:15], s[0:1], {KA_WS}")
    if timing:
        e("s_memrealtime s[40:41]"); stamp(0)
    wave_ids(e, sW)
    e("s_and_b32 s29, s2, 7")
    e("s_lshr_b32 s30, s2, 3")
    e(f"s_lshl_b32 s{sTile}, s29, 5")
    e(f"s_add_u32 s{sTile}, s{sTile}, s30")
    e(f"s_xor_b32 s{sPart}, s{sTile}, 1")
    e(f"s_and_b32 s{sSide}, s30, 1")
    e(f"s_mul_i32 s{sRing}, s{sW}, 20480")
    e(f"s_add_u32 s{sRing}, s{sRing}, {A_LDS_RING}")
    e.ext(dma_lane_regs(vrow, vchk))
    e(f"s_cmp_ge_u32 s{sTile}, 250")
    e(f"s_cbranch_scc1 {name}_cprep")
    e(f"v_and_b32 {M(0)}, 31, v0")
    e(f"v_bfe_u32 {M(1)}, v0, 4, 2")
    e(f"v_xor_b32 {M(1)}, {M(1)}, v0")
    e(f"v_and_b32 {M(1)}, 7, {M(1)}")
    e(f"v_lshlrev_b32 {M(1)}, 4, {M(1)}")
    e(f"v_lshl_add_u32 {VO(0)}, {vrow}, 9, {M(1)}")
    e(f"v_xor_b32 {VO(1)}, 64, {VO(0)}")
    e(f"v_add_u32 {VO(1)}, 3072, {VO(1)}")
    e(f"v_add_u32 {VO(2)}, 6144, {VO(0)}")
    e(f"v_add_u32 {VO(3)}, 6144, {VO(1)}")
    e(f"s_lshl_b32 s31, s{sW}, 7")
    e(f"s_lshl_b32 s32, s{sTile}, 14"); e("s_add_u32 s32, s32, s31")
    e(f"s_lshl_b32 s33, s{sPart}, 14"); e("s_add_u32 s33, s33, s31")
    e(f"s_mov_b32 m0, s{sRing}")
    segs = [
        dict(n=16, step=32*2048, jump=(8, -256*2048 + 512), setup=[
            f"s_lshl_b32 s34, s{sSide}, 10", f"s_lshl_b32 s35, s{sW}, 7", "s_add_u32 s34, s34, s35",
            f"s_add_u32 s{sB}, s6, s34", f"s_addc_u32 s{sB+1}, s7, 0"] + voff_setup(VO, vrow, vchk, 2048)),
        dict(n=16, step=32*512, setup=[
            f"s_lshl_b32 s34, s{sSide}, 18", f"s_lshl_b32 s35, s{sW}, 7", "s_add_u32 s34, s34, s35",
            f"s_add_u32 s{sB}, s8, s34", f"s_addc_u32 s{sB+1}, s9, 0"] + voff_setup(VO, vrow, vchk, 512)),
        dict(n=24, step=32*1536, jump=(8, -256*1536 + 512), setup=[
            f"s_lshl_b32 s35, s{sW}, 7",
            f"s_add_u32 s{sB}, s10, s35", f"s_addc_u32 s{sB+1}, s11, 0"] + voff_setup(VO, vrow, vchk, 1536)),
    ]
    st = TStream(e, RING, 8, VO, sB, sRing, VT, segs)
    e.stream = st
    st.wide = (128, B.at(64), 16)
    e(f"s_lshl_b32 s35, s30, 2"); e(f"s_add_u32 s35, s35, s{sW}")
    e(f"s_mul_i32 s34, s35, 3072"); e("s_lshl_b32 s35, s35, 12")
    e(f"v_lshlrev_b32 {M(9)}, 7, {M(0)}")
    e(f"v_add_u32 {M(10)}, s35, {M(9)}")
    e(f"v_min_u32 {M(9)}, 2944, {M(9)}")
    e(f"v_add_u32 {M(9)}, s34, {M(9)}")
    e("s_xor_b32 s44, s2, 8")
    e(f"s_lshl_b32 s44, s44, 2"); e(f"s_add_u32 s44, s44, s{sW}")
    e(f"s_lshl_b32 s45, s2, 2"); e(f"s_add_u32 s45, s45, s{sW}")
    e(f"s_lshl_b32 s46, s44, 9"); e(f"s_add_u32 s46, s46, {WS_EXC}"); e(f"v_mov_b32 {M(4)}, s46")
    e(f"s_lshl_b32 s46, s45, 9"); e(f"s_add_u32 s46, s46, {WS_EXC}"); e(f"v_mov_b32 {M(5)}, s46"); e(f"s_add_u32 s49, s46, 192")
    for k, st_ in enumerate((sTile, sPart)):
        e(f"s_cmp_ge_u32 s{st_}, 125")
        e("s_cselect_b32 s46, 375, 0")
        e(f"s_add_u32 s46, s46, s{st_}")
        e(f"s_mul_i32 s47, s{sW}, {NT}")
        e("s_add_u32 s46, s46, s47")
        if k == 0:
            e("s_lshl_b32 s47, s46, 12"); e(f"s_add_u32 s47, s47, {WS_Q}"); e(f"v_add_u32 {M(3)}, s47, v1")
        e("s_lshl_b32 s46, s46, 13"); e(f"s_add_u32 s46, s46, {WS_KV + 4096}")
        e(f"v_add_u32 {M(6+k)}, s46, v1")
        if k == 0: e("s_mov_b32 s48, s46")
    e(f"s_lshl_b32 s46, s{sTile}, 14"); e(f"s_lshl_b32 s47, s{sW}, 12"); e("s_add_u32 s46, s46, s47"); e(f"s_add_u32 s46, s46, {WS_X1}")
    e(f"v_add_u32 {M(1)}, s46, v1")
    e("s_getreg_b32 s47, hwreg(HW_REG_XCC_ID, 0, 4)")
    e("s_add_u32 s47, s47, 16")
    e(f"v_mov_b32 {M(11)}, 0")
    e("s_waitcnt lgkmcnt(0)")
    stamp()
    if TLB:
        for p in (6, 8, 10): a(f"s_load_dword s60, s[{p}:{p+1}], 0")
        a(f"s_load_dword s60, s[14:15], s49"); a(f"s_load_dword s60, s[14:15], s48")
    XQ = [XP, ACC.at(64)]
    def xload(tt):
        for i in range(4):
            e(f"global_load_lds_dwordx4 {VO(i)}, s[{16+2*tt}:{17+2*tt}] offset:{1024*i}", ("x", tt))
    e(f"s_add_u32 s16, s4, s32"); e("s_addc_u32 s17, s5, 0")
    xload(0)
    e("s_add_u32 m0, m0, 4096")
    e(f"s_add_u32 s18, s4, s33"); e("s_addc_u32 s19, s5, 0")
    if not XST:
        xload(1)
        e(f"global_load_dword v13, {M(10)}, s[6:7]")
    e(f"global_load_dword {M(8)}, {M(4)}, s[14:15] offset:128 sc1", "old")
    if XST:
        e(f"v_and_b32 {M(12)}, 3, v0"); e(f"v_lshlrev_b32 {M(12)}, 7, {M(12)}")
        e("s_lshl_b32 s46, s45, 9"); e(f"v_add_u32 {M(13)}, s46, {M(12)}")
        e(f"global_load_dword v13, {M(13)}, s[6:7]")
        e(f"global_load_dword v14, {M(13)}, s[8:9]")
        e(f"v_min_u32 {M(12)}, 256, {M(12)}"); e("s_mul_i32 s46, s45, 384"); e(f"v_add_u32 {M(13)}, s46, {M(12)}")
        e(f"global_load_dword v15, {M(13)}, s[10:11]")
    tr_lane_regs(e, VT, sRing, T)
    e(f"v_lshlrev_b32 {M(0)}, 3, {M(0)}")
    e(f"v_add_u32 {vrd}, {A_LDS_ST}, {M(0)}")
    e(f"s_lshl_b32 s33, s{sW}, 8")
    e(f"v_add_u32 {vst}, s33, {vrd}")
    e(f"s_lshl_b32 s33, s{sW}, 13")
    e(f"v_add_u32 {vH}, s33, v1")
    e(f"s_lshl_b32 s33, s{sW}, 12")
    e(f"v_add_u32 {M(0)}, s33, v1")
    XA = HB
    e(f"v_and_b32 {XA(1)}, 31, v0")
    e(f"v_bfe_u32 {XA(0)}, v0, 1, 3")
    e(f"v_lshlrev_b32 {XA(0)}, 4, {XA(0)}")
    e(f"v_lshl_add_u32 {XA(0)}, {XA(1)}, 7, {XA(0)}")
    e(f"v_bfe_u32 {XA(1)}, v0, 5, 1")
    e(f"v_lshl_add_u32 {XA(0)}, {XA(1)}, 3, {XA(0)}")
    e(f"v_add_u32 {XA(0)}, s{sRing}, {XA(0)}")
    for c in range(1, 8):
        e(f"v_xor_b32 {XA(c)}, {16*c}, {XA(0)}")
    if code_kb:
        e("s_getpc_b64 s[36:37]")
        e(f"v_and_b32 {M(12)}, 1, v0"); e(f"v_lshlrev_b32 {M(12)}, 7, {M(12)}")
        e(f"s_lshr_b32 s33, s35, 4")
        e(f"v_add_u32 {M(12)}, s33, {M(12)}")
        e(f"global_load_dword v13, {M(12)}, s[36:37]")
    def pretouch():
        e(f"v_and_b32 {M(12)}, 31, v0"); e(f"v_lshlrev_b32 {M(12)}, 7, {M(12)}"); e(f"v_add_u32 {M(12)}, s48, {M(12)}")
        e(f"global_load_dword v15, {M(12)}, s[14:15]")
    X = [ACC.at(0), ACC.at(32)]
    e.wait(vm=("x", 0))
    stamp()
    if XST:
        xload(1)
        e(f"global_load_dword v13, {M(10)}, s[6:7]")
    def publish():
        e.wait(vm="old")
        e(f"v_and_b32 {M(8)}, -16, {M(8)}")
        e(f"v_add_u32 {M(8)}, s47, {M(8)}")
        e(f"global_store_dword {M(5)}, {M(8)}, s[14:15] sc1")
        e(f"global_store_dword {M(5)}, {M(11)}, s[14:15] offset:256 sc1")
        e(f"global_store_dword {M(5)}, {M(11)}, s[14:15] offset:320 sc1")
        e(f"global_store_dword {M(5)}, {M(11)}, s[14:15] offset:384 sc1")
        e(f"v_readfirstlane_b32 s{sNonce}, {M(8)}")
    for tt in range(2):
        if tt == 1: e.wait(vm=("x", 1))
        for c in range(8):
            e(f"ds_read_b64 {XQ[tt](2*c,2)}, {XA(c)} offset:{4096*tt}", ("xr", tt))
        if tt == 1 and XST: publish()
        e.wait(lg=("xr", tt))
        if FINE: stamp()
        if tt == 1:
            for _ in range(4): st.dma()
        unpack(e, X[tt], XQ[tt], 16)
        if tt == 1:
            for _ in range(4): st.dma()
        ln_partial(e, X[tt], T, vst, 1024*tt)
    if FINE: stamp()
    if not XST: publish()
    for _ in range(4): st.dma()
    if PRET == 3: pretouch()
    e.wait_lg0(); e("s_barrier")
    stamp()
    ln_read(e, T, vrd, 0); ln_read(e, T2, vrd, 1024)
    for _ in range(4): st.dma()
    e(f"global_load_dword v14, {M(10)}, s[8:9]")
    e(f"global_load_dword v15, {M(9)}, s[10:11]")
    if PRET == 1: pretouch()
    e.lg.drain()
    for tt, t_ in enumerate((T, T2)):
        e.raw("s_waitcnt lgkmcnt(4)")
        ln_finish(e, t_, LOG2E)
        ln_apply(e, X[tt], X[tt], t_)
        for f in range(4):
            pack(e, ACC.at(64 + 16*tt + 4*f), X[tt].at(8*f), 4)
            e(f"ds_write_b128 {M(0)}, {ACC(64+16*tt+4*f,4)} offset:{32768 + 16384*tt + 1024*f}")
    e.wait_lg0(); e("s_barrier")
    stamp()
    for _ in range(8): st.tr()
    e(f"global_load_dword {M(9)}, {M(4)}, s[14:15] sc1", "req")
    for ks in range(16):
        for tt in range(2):
            e(f"ds_read_b128 {B(64*tt+4*ks,4)}, v1 offset:{32768 + 16384*tt + 1024*ks}", ("b", tt, ks))
    RX = ACC.at(64); X1 = ACC.at(96)
    def send_fill():
        o = [lambda: e.wait(vm="req"), f"v_xor_b32 {M(12)}, {M(9)}, {M(8)}", f"v_and_b32 {M(12)}, 15, {M(12)}",
             f"v_cmp_eq_u32 vcc, 0, {M(12)}", f"v_readfirstlane_b32 s{sReq}, {M(9)}"]
        for f in range(4):
            o += [f"v_cvt_pk_bf16_f32 {RX(4*f+r)}, {ACC(32+8*f+2*r)}, {ACC(33+8*f+2*r)}" for r in range(4)]
            o.append(lambda f=f: e.xstore(f"global_store_dwordx4 {M(7)}, {RX(4*f,4)}, s[14:15] offset:{1024*f}", "ex"))
        return o
    def p3_hook():
        if PRET == 2:
            pretouch(); e.vm.q[-1] = "pt"; st.slow_op("pt", 2500)
    def post():
        e.wait(vm="ex")
        e.xstore(f"global_store_dword {M(5)}, {M(9)}, s[14:15] offset:128")
    def peek():
        e(f"global_load_dword {M(10)}, {M(4)}, s[14:15] offset:128 sc1", "flag")
    a2 = ff_split(e, st, B, ACC, TMP, PK, HB, vH, A_LDS_H, (lambda: None) if FINE else stamp, send_fill=send_fill,
                  p4_hooks={18: post, 28: peek}, p3_hook=p3_hook)
    resend = [f"global_store_dwordx4 {M(7)}, {RX(4*f,4)}, s[14:15] offset:{1024*f} sc1" for f in range(4)] + \
             ["s_waitcnt vmcnt(0)", f"global_store_dword {M(5)}, {M(9)}, s[14:15] offset:128 sc1"]
    RY = ACC.at(80)
    e.auto = True
    unpack(e, X1, XP, 16)
    e.auto = False
    e(f"s_mov_b32 s31, {fx(0.5/LOG2E)}")
    e.wait(vm="flag")
    e(f"s_mov_b32 s33, {SPIN}")
    e(f"{name}_poll:")
    e(f"v_readfirstlane_b32 s34, {M(10)}")
    e("s_sub_u32 s33, s33, 1")
    e(f"s_cselect_b32 s34, s{sNonce}, s34")
    e(f"s_cmp_lg_u32 s34, s{sNonce}")
    e(f"s_cbranch_scc1 {name}_pollc")
    e.cold.append([f"{name}_pollc:",
                   f"global_load_dword {M(10)}, {M(4)}, s[14:15] offset:128 sc1", f"global_load_dword {M(9)}, {M(4)}, s[14:15] sc1",
                   "s_waitcnt vmcnt(0)", f"v_readfirstlane_b32 s35, {M(9)}", "s_nop 0", f"s_cmp_eq_u32 s35, s{sReq}", f"s_cbranch_scc1 {name}_poll",
                   f"s_mov_b32 s{sReq}, s35"] + resend + [f"s_branch {name}_poll"])
    for f in range(4):
        e(f"global_load_dwordx4 {RY(4*f,4)}, {M(6)}, s[14:15] offset:{1024*f} sc1", ("rx", f))
    e(f"global_load_dword {M(9)}, {M(4)}, s[14:15] sc1", "req2")
    e.auto = True
    for r in range(32):
        e(f"v_fmac_f32 {X1(r)}, s31, {a2(0,0)(r)}")
    stamp()
    U = ACC.at(0)
    for f in range(4):
        e.wait(vm=("rx", f))
        unpack(e, U.at(8*f), RY.at(4*f), 4)
        for r in range(8*f, 8*f+8):
            e(f"v_fmac_f32 {X1(r)}, s31, {U(r)}")
        pack(e, XP.at(4*f), X1.at(8*f), 4)
    ln_partial(e, X1, T, vst, 2048)
    e.auto = False
    e.wait(vm="req2")
    e(f"v_readfirstlane_b32 s35, {M(9)}")
    for f in range(4):
        e(f"global_store_dwordx4 {M(1)}, {XP(4*f,4)}, s[14:15] offset:{1024*f} sc1", "x1")
    st.slow_op("x1", 2500)
    e(f"s_cmp_lg_u32 s35, s{sReq}")
    e(f"s_cbranch_scc1 {name}_echoc")
    e(f"{name}_echo:")
    e.cold.append([f"{name}_echoc:"] + resend + [f"s_branch {name}_echo"])
    e.wait_lg0(); st.rdone = st.r // 8
    e("s_barrier")
    ln_read(e, T, vrd, 2048)
    e(f"s_mov_b32 s31, {fx(LOG2E/8)}")
    e.wait_lg0()
    e.auto = True
    ln_finish(e, T, 1.0)
    ln_apply(e, X1, X1, T)
    for f in range(4):
        pack(e, U.at(4*f), X1.at(8*f), 4)
        e(f"ds_write_b128 {M(0)}, {U(4*f,4)} offset:{1024*f}")
    e.auto = False
    e.wait_lg0(); st.rdone = st.r // 8
    e("s_barrier")
    for ks in range(16):
        e(f"ds_read_b128 {B(4*ks,4)}, v1 offset:{1024*ks}", ("b", ks))
    stamp()
    def aq(m, t): return ACC.at(32*(m & 1) + 16*t)
    def out_ops(m):
        o = []
        for t in range(2):
            acc = aq(m, t); pk = ACC.at(64 + 16*m + 8*t)
            if m == 0:
                o += [f"v_mul_f32 {acc(r)}, s31, {acc(r)}" for r in range(16)]
            for s in range(2):
                o += [f"v_cvt_pk_bf16_f32 {pk(4*s+r)}, {acc(8*s+2*r)}, {acc(8*s+2*r+1)}" for r in range(4)]
                off = (2*t + s) * 1024
                o.append(f"global_store_dwordx4 {M(3) if m == 0 else M(6)}, {pk(4*s,4)}, s[14:15] offset:{off - (4096 if m == 1 else 0)}{'' if m == 2 else ' sc1'}")
        return o
    held = []
    for m in range(3):
        gaps = spread(out_ops(m-1), 32, 3) if m > 0 else [[] for _ in range(32)]
        k = 0
        for ks in range(16):
            if m == 0: e.wait(lg=("b", ks))
            for t in range(2):
                A = st.take()
                if m == 2: mm(e, aq(m, t), B(4*ks, 4), A, ks == 0)
                else: mm(e, aq(m, t), A, B(4*ks, 4), ks == 0)
                st.pump()
                if held and st.d == 4 * st.total: e(held.pop(0))
                e.ext([x for x in gaps[k] if not x.startswith("global_store")])
                held += [x for x in gaps[k] if x.startswith("global_store")]; k += 1
    e.ext(held)
    stamp()
    e("s_nop 7"); e("s_nop 3")
    e.ext(out_ops(2))
    if timing:
        a("s_mov_b64 s[4:5], s[14:15]")
        tail_timing(a, sW, 0, stc[0])
    a("s_endpgm")
    e.emit_cold()

    a(f"{name}_cprep:")
    a("s_sub_u32 s31, s30, 26")
    a("s_lshl_b32 s31, s31, 2")
    a(f"s_add_u32 s31, s31, s{sW}")
    a("s_lshr_b32 s32, s31, 1")
    a("s_and_b32 s33, s31, 1")
    a("s_waitcnt lgkmcnt(0)")
    cs = csubs()
    for i, (ka, so, rs, D0, Dn, Dk, D1) in enumerate(cs):
        if i < len(cs) - 1:
            a(f"s_cmp_lg_u32 s32, {i}")
            a(f"s_cbranch_scc1 {name}_n{i}")
        a(f"s_load_dwordx2 s[6:7], s[0:1], {ka}")
        a(f"s_mov_b32 s34, {so}"); a(f"s_movk_i32 s35, {rs}")
        a(f"s_movk_i32 s36, {D0}"); a(f"s_movk_i32 s37, {Dn}"); a(f"s_movk_i32 s38, {Dk*1024}"); a(f"s_mov_b32 s39, {D1*1024}")
        if i < len(cs) - 1:
            a(f"s_branch {name}_go")
            a(f"{name}_n{i}:")
    a(f"{name}_go:")
    a(f"s_lshl_b32 s{sRing}, s{sW}, 15")
    tr_lane_regs(a, VT, sRing, T)
    a(f"v_mul_lo_u32 {VO(0)}, {vrow}, s35")
    a(f"v_add_u32 {VO(0)}, {VO(0)}, {vchk}")
    a("s_lshl_b32 s44, s35, 3"); a("s_sub_u32 s44, s44, 1024")
    for i in range(1, 4):
        a(f"v_add_u32 {VO(i)}, s44, {VO(i-1)}")
    a("s_lshl_b32 s44, s33, 8"); a("s_add_u32 s34, s34, s44")
    a("s_lshl_b32 s44, s33, 1"); a("s_mul_i32 s44, s44, s37"); a("s_add_u32 s36, s36, s44")
    a("s_lshl_b32 s36, s36, 10"); a("s_lshl_b32 s37, s37, 10")
    a("s_lshl_b32 s35, s35, 5")
    srd_off(a, 8, 14, WS_WC, 4 * NFC * 1024)
    a("s_mov_b32 s45, 2")
    a("s_waitcnt lgkmcnt(0)")
    a("s_add_u32 s6, s6, s34"); a("s_addc_u32 s7, s7, 0")
    a(f"{name}_round:")
    a(f"s_mov_b64 s[{sB}:{sB+1}], s[6:7]")
    a(f"s_mov_b32 m0, s{sRing}")
    a("s_mov_b32 s46, 8")
    a(f"{name}_iss:")
    for i in range(4):
        a(f"global_load_lds_dwordx4 {VO(i)}, s[{sB}:{sB+1}] offset:{1024*i}")
    a(f"s_add_u32 s{sB}, s{sB}, s35"); a(f"s_addc_u32 s{sB+1}, s{sB+1}, 0")
    a("s_add_u32 m0, m0, 4096")
    a("s_sub_u32 s46, s46, 1"); a("s_cmp_lg_u32 s46, 0"); a(f"s_cbranch_scc1 {name}_iss")
    a(f"v_mov_b32 {T(0)}, {VT(0)}"); a(f"v_mov_b32 {T(1)}, {VT(1)}")
    a("s_mov_b32 s47, s36")
    a("s_mov_b32 s46, 8")
    a(f"{name}_cv:")
    a("s_waitcnt vmcnt(28)")
    for sl in range(2):
        for t in range(2):
            for u in range(2):
                a(f"ds_read_b64_tr_b16 {ACC(8*sl+4*t+2*u,2)}, {T(t)} offset:{2048*sl + 1024*u}")
    a(f"v_add_u32 {T(0)}, 4096, {T(0)}"); a(f"v_add_u32 {T(1)}, 4096, {T(1)}")
    a("s_add_u32 s44, s47, s39")
    a("s_waitcnt lgkmcnt(0)")
    for sl in range(2):
        a(f"buffer_store_dwordx4 {ACC(8*sl,4)}, v1, s[8:11], s47 offen {stfl}")
        a(f"buffer_store_dwordx4 {ACC(8*sl+4,4)}, v1, s[8:11], s44 offen {stfl}")
        a("s_add_u32 s47, s47, s38"); a("s_add_u32 s44, s44, s38")
    a("s_sub_u32 s46, s46, 1"); a("s_cmp_lg_u32 s46, 0"); a(f"s_cbranch_scc1 {name}_cv")
    a("s_add_u32 s6, s6, 128"); a("s_addc_u32 s7, s7, 0")
    a("s_add_u32 s36, s36, s37")
    a("s_sub_u32 s45, s45, 1"); a("s_cmp_lg_u32 s45, 0"); a(f"s_cbranch_scc1 {name}_round")
    a(f"s_load_dwordx2 s[6:7], s[0:1], {KA_DW}")
    a("s_mul_i32 s31, s31, 3")
    a("s_mov_b32 s45, 3")
    a("s_waitcnt lgkmcnt(0)")
    srd(a, 16, 6, 31 * 512)
    a(f"{name}_tz:")
    a("s_mul_i32 s32, s31, 3641"); a("s_lshr_b32 s32, s32, 16")
    a("s_mul_i32 s33, s32, 18"); a("s_sub_u32 s33, s31, s33")
    a("s_cmp_ge_u32 s33, 9"); a("s_cselect_b32 s34, 1, 0")
    a("s_mul_i32 s35, s34, 9"); a("s_sub_u32 s35, s33, s35")
    a("v_and_b32 v2, 3, v0")
    a("v_bfe_u32 v3, v0, 2, 4")
    a("s_lshl_b32 s36, s32, 1"); a("s_add_u32 s36, s36, s34"); a("s_lshl_b32 s36, s36, 6")
    a("v_lshl_add_u32 v3, v3, 1, s36")
    a("s_lshl_b32 s35, s35, 2"); a("s_sub_u32 s35, s35, 1")
    a("v_sub_u32 v2, s35, v2")
    for k in range(4):
        a(f"v_add_u32 v4, {k}, v2")
        a("v_min_u32 v4, 31, v4")
        a(f"v_lshl_add_u32 v{5+k}, v4, 9, v3")
    a(f"s_mul_i32 s36, s32, {NFC}"); a("s_add_u32 s36, s36, s33"); a("s_add_u32 s36, s36, 96"); a("s_lshl_b32 s36, s36, 10")
    for g in range(2):
        for k in range(4):
            a(f"buffer_load_ushort v{16+4*g+k}, v{5+k}, s[16:19], 0 offen offset:{32*g}")
    a("s_waitcnt vmcnt(0)")
    for p in range(4):
        a(f"v_lshl_or_b32 v{24+p}, v{16+2*p+1}, 16, v{16+2*p}")
    a(f"buffer_store_dwordx4 v[24:27], v1, s[8:11], s36 offen {stfl}")
    a("s_add_u32 s31, s31, 1")
    a("s_sub_u32 s45, s45, 1"); a("s_cmp_lg_u32 s45, 0"); a(f"s_cbranch_scc1 {name}_tz")
    if timing:
        a("s_mov_b64 s[4:5], s[14:15]")
        tail_timing(a, sW, 3, 1)
    a(f"{name}_end:")
    a("s_endpgm")
    kernel_desc(a, name, 512, 256)
```

```python
from common import *
from sched import *
from ffs import *
from ka import tail_timing
from ka2 import SPIN

C_LDS_H = 0
C_LDS_AT = 0
C_LDS_G = 32768
GP = 160
C_LDS_SC = 73728
SP = 80
C_LDS_B = 94208
C_LDS_ST = 126976
C_LDS = 126976 + 4096
OP = 528

def gen_c(a, name, timing=False, stfl="sc1"):
    e = Em(a, name)
    sW, sTile = 20, 21
    B = R("a", 0); RING = R("a", 128)
    ACC = R("v", 16)
    XP = [R("v", 144), R("v", 160)]
    TMP = R("v", 144); PK = R("v", 148); HB = R("v", 156)
    T = R("v", 180); T2 = R("v", 188)
    X3 = R("v", 196)
    G = R("v", 228)
    M = R("v", 252)
    vW, vH, vst, vrd = "v2", "v3", "v5", "v6"
    vpc, voc, vpd, vod = "v13", "v14", "v15", "v4"
    stc = [0]
    def stamp(k=None):
        if timing:
            a(f"s_memtime s[{64+2*stc[0]}:{65+2*stc[0]}]"); stc[0] += 1
    kernel_head(a, name)
    e("s_and_b32 s29, s2, 7")
    e("s_lshr_b32 s30, s2, 3")
    e(f"s_lshl_b32 s{sTile}, s29, 5")
    e(f"s_add_u32 s{sTile}, s{sTile}, s30")
    e("s_cmp_ge_u32 s2, 256")
    e(f"s_cbranch_scc1 {name}_end")
    e(f"s_cmp_ge_u32 s{sTile}, 250")
    e(f"s_cbranch_scc1 {name}_end")
    e(f"s_load_dwordx2 s[4:5], s[0:1], {KA_WS}")
    e(f"s_load_dwordx2 s[6:7], s[0:1], {KA_OUT}")
    if timing:
        e("s_memrealtime s[40:41]"); stamp()
    wave_ids(e, sW)
    e("v_and_b32 v7, 31, v0")
    e("v_xor_b32 v8, 256, v1")
    e("v_and_b32 v9, 16, v7")
    e("v_lshlrev_b32 v9, 10, v9")
    e("v_add_u32 v8, v8, v9")
    e(f"s_lshl_b32 s24, s{sTile}, 14")
    e("s_sub_u32 s24, s24, 16384")
    e(f"s_lshl_b32 s25, s{sW}, 12")
    e("s_add_u32 s24, s24, s25")
    e("v_add_u32 v8, s24, v8")
    e("v_add_u32 v9, 16384, v8")
    e(f"s_add_u32 m0, s25, {C_LDS_AT}")
    e(f"s_mul_i32 s23, s{sW}, {NFC*1024}")
    e(f"s_add_u32 s23, s23, {WS_WC + 4096}")
    e(f"v_add_u32 {vW}, s23, v1")
    e("s_and_b32 s22, s30, 1")
    e("s_lshl_b32 s22, s22, 17")
    e("s_waitcnt lgkmcnt(0)")
    srd_off(e, 8, 4, WS_ATT, ATT_SZ)
    st = DStream(e, RING, 32, vW, 4, 146 + 128)
    st.jumps[146] = "s22"
    e.stream = st
    for tt in range(2):
        if tt == 1:
            e(f"s_add_u32 m0, s25, {C_LDS_AT + 16384}")
            e("s_nop 0")
        for f in range(4):
            e(f"buffer_load_dwordx4 v{8+tt}, s[8:11], 0 offen offset:{1024*f} lds", "att")
    for _ in range(20): st.load()
    srd_off(e, 12, 4, WS_X1, ATT_SZ)
    srd(e, 16, 6, 8000 * 512)
    e("v_lshlrev_b32 v10, 3, v7")
    e(f"v_add_u32 {vrd}, {C_LDS_ST}, v10")
    e(f"s_lshl_b32 s23, s{sW}, 8")
    e(f"v_add_u32 {vst}, s23, {vrd}")
    e(f"s_cmp_ge_u32 s{sTile}, 125")
    e("s_cselect_b32 s26, 125, 0")
    e(f"s_sub_u32 s26, s{sTile}, s26")
    e("s_cmp_eq_u32 s26, 0")
    e("s_cselect_b32 s30, 0, -1")
    e("s_cmp_eq_u32 s26, 124")
    e("s_cselect_b32 s31, 0, -1")
    e("s_mov_b32 s32, 0xffff0000")
    e("s_mov_b32 s33, 0xffff0000")
    e(f"s_lshl_b32 s27, s{sW}, 12")
    e("v_add_u32 v10, s27, v1")
    e("s_xor_b32 s34, s2, 8")
    e(f"s_lshl_b32 s34, s34, 2"); e(f"s_add_u32 s34, s34, s{sW}")
    e(f"s_lshl_b32 s35, s2, 2"); e(f"s_add_u32 s35, s35, s{sW}")
    e(f"s_lshl_b32 s36, s34, 9"); e(f"s_add_u32 s36, s36, {WS_EXC}"); e(f"v_mov_b32 {vpc}, s36")
    e(f"s_lshl_b32 s36, s35, 9"); e(f"s_add_u32 s36, s36, {WS_EXC}"); e(f"v_mov_b32 {voc}, s36")
    e(f"s_lshl_b32 s36, s{sTile}, 14"); e("s_add_u32 s36, s36, s25"); e(f"v_add_u32 {vod}, s36, v1")
    e(f"v_xor_b32 {vpd}, 16384, {vod}")
    e("s_getreg_b32 s37, hwreg(HW_REG_XCC_ID, 0, 4)")
    e("s_add_u32 s37, s37, 1")
    e(f"v_mov_b32 {M(1)}, s37")
    e(f"global_store_dword {voc}, {M(1)}, s[4:5] offset:320 sc1")
    e(f"s_lshl_b32 s36, s{sW}, 13")
    e(f"v_add_u32 {vH}, s36, v1")
    e.wait(vm="att")
    e("s_barrier")
    stamp()
    def bread(ks, tt): return (f"ds_read_b128 {B(64*tt+4*ks,4)}, v1 offset:{C_LDS_AT + 16384*tt + 1024*ks}", ("b", tt, ks))
    def gemm2x2(accf, swap, extra=None):
        e.ext([bread(ks, tt) for ks in range(6) for tt in range(2)])
        extra = list(extra or [])
        for ks in range(16):
            e.wait(lg=("b", 1, ks))
            for t in range(2):
                A = st.acquire(st.ci)
                for tt in range(2):
                    b = B(64*tt+4*ks, 4)
                    mm(e, accf(tt, t), b if swap else A, A if swap else b, ks == 0)
                    if tt == 1: st.release()
                    if t == 0 and ks + 6 < 16: e.ext([bread(ks+6, tt)])
                    elif extra and tt == 0 and ks >= 2: e.ext([extra.pop(0)])
                    else: st.pump()
    xl = [(f"buffer_load_dwordx4 {XP[tt](4*f,4)}, v{8+tt}, s[12:15], 0 offen offset:{1024*f}", ("x1", tt)) for tt in range(2) for f in range(4)]
    gemm2x2(lambda tt, t: ACC.at(32*tt+16*t), False, xl)
    stamp()
    e.auto = True
    X = [ACC.at(64), ACC.at(96)]
    for tt in range(2):
        e.wait(vm=("x1", tt))
        unpack(e, X[tt], XP[tt], 16)
    for tt in range(2):
        for r in range(0, 32, 2):
            e(f"v_pk_add_f32 {X[tt](r,2)}, {X[tt](r,2)}, {ACC(32*tt+r,2)}")
        ln_partial(e, X[tt], T, vst, 1024*tt)
    for r in range(32):
        e(f"v_cndmask_b32 {X3(r)}, {X[1](r)}, {X[0](r)}, s[32:33]")
    e.wait_lg0(); e("s_barrier")
    ln_read(e, T, vrd, 0); ln_read(e, T2, vrd, 1024)
    e.lg.drain()
    for tt, t_ in enumerate((T, T2)):
        e.raw("s_waitcnt lgkmcnt(4)")
        ln_finish(e, t_, LOG2E)
        ln_apply(e, X[tt], X[tt], t_)
        for f in range(4):
            pack(e, ACC.at(16*tt + 4*f), X[tt].at(8*f), 4)
            e(f"ds_write_b128 v10, {ACC(16*tt+4*f,4)} offset:{C_LDS_AT + 16384*tt + 1024*f}")
    e(f"s_lshl_b32 s27, s{sW}, 6")
    e("v_add_u32 v7, s27, v7")
    e(f"v_mul_u32_u24 v7, {GP}, v7")
    e("v_bfe_u32 v8, v0, 5, 1")
    e("v_lshl_add_u32 v7, v8, 3, v7")
    e(f"v_add_u32 v7, {C_LDS_G}, v7")
    e(f"global_load_dword {M(2)}, {vpc}, s[4:5] offset:320 sc1", "xcc")
    e.wait_lg0(); e("s_barrier")
    e.auto = False
    stamp()
    def pacc(c, sel, tt): return ACC.at(64*c + 32*sel + 16*tt)
    def glu_ops(c):
        o = []
        for tt in range(2):
            aa, bb = pacc(c, 0, tt), pacc(c, 1, tt)
            for g in range(0, 16, 2):
                t0, t1 = T(g % 4), T(g % 4 + 1)
                pk = G(8*tt + g//2)
                o += [f"v_exp_f32 {t0}, -{bb(g)}", f"v_exp_f32 {t1}, -{bb(g+1)}",
                      f"v_add_f32 {t0}, 1.0, {t0}", f"v_add_f32 {t1}, 1.0, {t1}",
                      f"v_rcp_f32 {t0}, {t0}", f"v_rcp_f32 {t1}, {t1}",
                      f"v_mul_f32 {t0}, {aa(g)}, {t0}", f"v_mul_f32 {t1}, {aa(g+1)}, {t1}",
                      f"v_cvt_pk_bf16_f32 {pk}, {t0}, {t1}"]
                if tt == 0 and g < 8: o.append(f"v_and_b32 {pk}, s30, {pk}")
                if tt == 1 and g >= 8: o.append(f"v_and_b32 {pk}, s31, {pk}")
                if g % 4 == 2:
                    i = g // 4
                    o.append(f"ds_write_b64 v7, {G(8*tt+2*i,2)} offset:{32*GP*c + 64*tt + 16*i}")
        return o
    gemm2x2(lambda tt, sel: pacc(0, sel, tt), True)
    gaps = spread(glu_ops(0), 64, 3)
    k = 0
    for ks in range(16):
        for sel in range(2):
            A = st.acquire(st.ci)
            for tt in range(2):
                mm(e, pacc(1, sel, tt), B(64*tt+4*ks, 4), A, ks == 0)
                if tt == 1: st.release()
                st.pump()
                e.ext(gaps[k]); k += 1
    stamp()
    e.auto = True
    e("v_bfe_u32 v8, v0, 2, 4")
    e("v_add_u32 v8, s27, v8")
    e("v_and_b32 v11, 3, v0")
    e("v_lshlrev_b32 v11, 3, v11")
    e(f"v_mul_u32_u24 v12, {SP}, v8")
    e("v_add_u32 v12, v12, v11")
    e(f"v_add_u32 v12, {C_LDS_SC}, v12")
    e(f"v_mul_u32_u24 v8, {GP}, v8")
    e("v_add_u32 v8, v8, v11")
    e(f"v_add_u32 v8, {C_LDS_G}, v8")
    CB = [B.at(0), B.at(64)]
    CA = [ACC.at(0), ACC.at(16)]
    def conv_reads(gp):
        return [(f"ds_read_b64 {CB[gp](26*g+2*q,2)}, v8 offset:{(32*gp+16*g)*GP + 8*q}", "cr") for g in range(2) for q in range(13)]
    def conv_mfma(gp, fill):
        gaps = spread(fill, 36, 0); k = 0
        for kb in range(9):
            A = st.acquire(st.ci, 3)
            base = int(A[A.index("[")+1:A.index(":")])
            for g in range(2):
                for rb in range(2):
                    acc = CA[gp](8*g+4*rb, 4)
                    e(f"v_mfma_f32_4x4x4_16b_bf16 {acc}, a[{base+2*g}:{base+2*g+1}], {CB[gp](26*g+2*(4*rb+kb),2)}, {'0' if kb == 0 else acc}")
                    if (g, rb) == (1, 1): st.release()
                    e.ext(gaps[k]); k += 1
    def conv_out(gp):
        ops = silu_ops(CA[gp], T, G.at(16))
        o = []
        for i in range(4):
            o += ops[18*i:18*i+18]
            o.append(f"ds_write_b64 v12, {G(16+2*i,2)} offset:{(32*gp+16*(i>>1))*SP + 32*(i&1)}")
        return o
    e.wait_lg0(16)
    e.ext(conv_reads(0))
    g1 = glu_ops(1)
    e.ext(g1[:30])
    e.wait(lg="cr")
    conv_mfma(0, g1[30:])
    e.wait_lg0(32)
    e.ext(conv_reads(1))
    co = conv_out(0)
    e.ext(co[:30])
    e.wait(lg="cr")
    conv_mfma(1, co[30:])
    e("v_bfe_u32 v8, v0, 2, 2")
    e("v_bfe_u32 v11, v0, 5, 1")
    e("v_lshl_add_u32 v8, v11, 2, v8")
    e(f"v_mul_u32_u24 v8, {SP}, v8")
    e("v_bfe_u32 v11, v0, 4, 1")
    e("v_xor_b32 v11, 1, v11")
    e("v_lshl_add_u32 v8, v11, 5, v8")
    e("v_and_b32 v11, 3, v0")
    e("v_lshl_add_u32 v8, v11, 3, v8")
    e(f"v_add_u32 v8, {C_LDS_SC}, v8")
    e.ext(conv_out(1))
    e.wait_lg0(); e("s_barrier")
    e.auto = False
    stamp()
    def scread(ks, u): return (f"ds_read_b64_tr_b16 {B(4*ks+2*u,2)}, v8 offset:{(16*ks+8*u)*SP}", ("s", ks))
    e.ext([scread(ks, u) for ks in range(7) for u in range(2)])
    A2 = ACC.at(64)
    for ks in range(16):
        e.wait(lg=("s", ks))
        for t in range(2):
            A = st.take()
            mm(e, A2.at(16*t), A, B(4*ks, 4), ks == 0)
            if ks + 7 < 16: e.ext([scread(ks+7, t)])
            st.pump()
    stamp()
    e.auto = True
    e(f"s_mov_b32 s28, {fx(1/LOG2E)}")
    e(f"v_add_u32 v9, {C_LDS_B}, v1")
    e(f"v_add_u32 v10, {C_LDS_B}, v10")
    e(f"v_mov_b32 {M(0)}, 1")
    e.wait(vm="xcc")
    e(f"v_cmp_eq_u32 vcc, s37, {M(2)}")
    e("s_nop 6")
    for r in range(32):
        e(f"v_fmac_f32 {X3(r)}, s28, {A2(r)}")
    ln_partial(e, X3, T, vst, 2048)
    e.wait_lg0(); e("s_barrier")
    ln_read(e, T, vrd, 2048)
    e.wait_lg0()
    ln_finish(e, T, LOG2E)
    ln_apply(e, ACC, X3, T)
    while st.load(): pass
    e.auto = False
    for f in range(4):
        pack(e, A2.at(4*f), ACC.at(8*f), 4)
        e.xstore(f"global_store_dwordx4 {vod}, {A2(4*f,4)}, s[6:7] offset:{1024*f}", "ex")
        e(f"ds_write_b128 v10, {A2(4*f,4)} offset:{1024*f}")
    e.wait_lg0(); e("s_barrier")
    for ks in range(16):
        e(f"ds_read_b128 {B(4*ks,4)}, v9 offset:{1024*ks}", ("b", 0, ks))
    stamp()
    RX = G
    def post(off):
        e.wait(vm="ex")
        e.xstore(f"global_store_dword {voc}, {M(0)}, s[4:5] offset:{off}")
    def peek(off):
        e(f"global_load_dword {M(1)}, {vpc}, s[4:5] offset:{off} sc1", "flag")
    def recv(lbl, off, vaddr):
        e.wait(vm="flag")
        e(f"s_mov_b32 s34, {SPIN}")
        e(f"{name}_{lbl}:")
        e(f"v_readfirstlane_b32 s35, {M(1)}")
        e("s_sub_u32 s34, s34, 1")
        e("s_cselect_b32 s35, 1, s35")
        e("s_cmp_lg_u32 s35, 1")
        e(f"s_cbranch_scc1 {name}_{lbl}c")
        e.cold.append([f"{name}_{lbl}c:", f"global_load_dword {M(1)}, {vpc}, s[4:5] offset:{off} sc1", "s_waitcnt vmcnt(0)", f"s_branch {name}_{lbl}"])
        for f in range(4):
            e(f"global_load_dwordx4 {RX(4*f,4)}, {vaddr}, s[6:7] offset:{1024*f} sc1", ("rx", f))
    def own_first():
        for f in range(4):
            e.wait(vm=("rx", f))
            e(f"ds_write_b128 v10, {RX(4*f,4)} offset:{16384 + 1024*f}")
        e.wait_lg0(); e("s_barrier")
        for ks in range(16):
            e(f"ds_read_b128 {B(64+4*ks,4)}, v9 offset:{16384 + 1024*ks}", ("b", 1, ks))
        stamp()
    def send_fill():
        o = []
        for f in range(4):
            o += [f"v_cvt_pk_bf16_f32 {RX(4*f+r)}, {ACC(32+8*f+2*r)}, {ACC(33+8*f+2*r)}" for r in range(4)]
            o.append(lambda f=f: e.xstore(f"global_store_dwordx4 {vpd}, {RX(4*f,4)}, s[6:7] offset:{1024*f}", "ex"))
        return o
    a2 = ff_split(e, st, B, ACC, TMP, PK, HB, vH, C_LDS_H, (lambda: None), own_first=own_first,
                  p1_hooks={2: lambda: post(256), 11: lambda: peek(256), 22: lambda: recv("p1", 256, vpd)},
                  send_fill=send_fill, p4_hooks={17: lambda: post(384), 27: lambda: peek(384)})
    stamp()
    e(f"s_mov_b32 s28, {fx(0.5/LOG2E)}")
    e("v_and_b32 v7, 31, v0")
    e("v_xor_b32 v7, 16, v7")
    e(f"v_mul_u32_u24 v7, {OP}, v7")
    e("v_bfe_u32 v8, v0, 5, 1")
    e("v_lshl_add_u32 v10, v8, 4, v7")
    e(f"s_lshl_b32 s27, s{sW}, 7")
    e(f"s_add_u32 s27, s27, {C_LDS_B}")
    e("v_add_u32 v10, s27, v10")
    e(f"v_mul_u32_u24 v8, {OP}, v8")
    e("v_and_b32 v7, 31, v0")
    e("v_lshl_add_u32 v8, v7, 4, v8")
    e(f"s_mul_i32 s27, s{sW}, {8*OP}")
    e(f"s_add_u32 s27, s27, {C_LDS_B}")
    e("v_add_u32 v8, s27, v8")
    recv("p2", 384, vod)
    for r in range(32):
        e(f"v_fmac_f32 {X3(r)}, s28, {a2(0,0)(r)}")
    e(f"s_lshl_b32 s24, s{sTile}, 14")
    e(f"s_lshl_b32 s25, s{sW}, 12")
    e("s_add_u32 s24, s24, s25")
    stamp()
    for f in range(4):
        e.wait(vm=("rx", f))
        unpack(e, ACC.at(8*f), RX.at(4*f), 4)
        for r in range(8*f, 8*f+8):
            e(f"v_fmac_f32 {X3(r)}, s28, {ACC(r)}")
    ln_partial(e, X3, T, vst, 3072)
    e.wait_lg0(); e("s_barrier")
    ln_read(e, T, vrd, 3072)
    e.wait_lg0()
    ln_finish(e, T, 1.0)
    ln_apply(e, X3, X3, T)
    pack(e, ACC, X3, 16)
    for f in range(4):
        e(f"v_permlane32_swap_b32 {ACC(4*f)}, {ACC(4*f+2)}")
        e(f"v_permlane32_swap_b32 {ACC(4*f+1)}, {ACC(4*f+3)}")
        e(f"ds_write_b128 v10, {ACC(4*f,4)} offset:{32*f}")
    e.wait_lg0(); e("s_barrier")
    for c in range(4):
        e(f"ds_read_b128 {ACC(16+4*c,4)}, v8 offset:{2*OP*c}", ("o", c))
    for c in range(4):
        e.wait(lg=("o", c))
        e(f"buffer_store_dwordx4 {ACC(16+4*c,4)}, v1, s[16:19], s24 offen offset:{1024*c}")
    if timing:
        tail_timing(a, sW, 2, stc[0])
    a("s_endpgm")
    e.emit_cold()
    a(f"{name}_end:")
    a("s_endpgm")
    kernel_desc(a, name, 512, 256)
```

```python
from asmlib import *

class Counter:
    def __init__(self, name, maxv):
        self.name, self.maxv, self.q = name, maxv, []
    def add(self, tag=None):
        self.q.append(tag)
    def need(self, tag):
        if tag not in self.q:
            return None
        i = len(self.q) - 1 - self.q[::-1].index(tag)
        cnt = len(self.q) - 1 - i
        self.q = self.q[i+1:]
        return min(cnt, self.maxv)
    def drain(self):
        self.q = []

def cost(s):
    op = s.split()[0]
    if op.startswith(("v_exp", "v_rcp", "v_rsq", "v_log", "v_sqrt")): return 8
    if op == "s_nop": return 4 * (int(s.split()[1]) + 1)
    if op == "s_barrier": return 120
    if op.startswith("buffer_"): return 8
    if op.startswith("ds_write_b128"): return 12
    if op.endswith(":") or op.startswith((".", ";")): return 0
    return 4

class Em:
    def __init__(self, a, name=""):
        self.a = a; self.name = name; self.cold = []
        self.vm = Counter("vmcnt", 63)
        self.lg = Counter("lgkmcnt", 15)
        self.t = 0; self.pipe = 0
        self.stream = None
        self.auto = False
        self.inpump = False
    def raw(self, s):
        op = s.split()[0]
        if op.startswith(("v_mfma", "v_smfmac")):
            d = 32 if "32x32" in op else (8 if "4x4" in op else 16)
            st = max(self.t, self.pipe); self.pipe = st + d; self.t = st + min(8, d)
        else:
            self.t += cost(s)
        self.a(s)
    def __call__(self, s, tag=None):
        op = s.split()[0]
        if op.startswith("ds_"): self.lg.add(tag)
        elif op.startswith(("buffer_", "global_")): self.vm.add(tag)
        self.raw(s)
        if self.auto and not self.inpump and self.stream and not op.startswith(("s_cmp", "v_cmp", "s_cbranch")) and not s.endswith(":"):
            self.pump()
    def ext(self, lst):
        for x in lst:
            if callable(x): x()
            elif isinstance(x, tuple): self(x[0], x[1])
            else: self(x)
    def xstore(self, ins, tag=None):
        n = len(self.cold)
        self.raw(f"s_cbranch_vccz {self.name}_xs{n}")
        self(ins, tag)
        self.a(f"{self.name}_xj{n}:")
        self.cold.append([f"{self.name}_xs{n}:", ins + " sc1", f"s_branch {self.name}_xj{n}"])
    def emit_cold(self):
        for blk in self.cold:
            for x in blk: self.a(x)
    def wait(self, vm=None, lg=None, extra=0):
        p = []
        if vm is not None:
            c = self.vm.need(vm)
            if c is not None: p.append(f"vmcnt({c})")
        if lg is not None:
            c = self.lg.need(lg)
            if c is not None: p.append(f"lgkmcnt({c})")
        if p:
            self.raw("s_waitcnt " + " ".join(p)); self.t += extra
    def wait_lg0(self, extra=64):
        self.lg.drain(); self.raw("s_waitcnt lgkmcnt(0)"); self.t += extra
    def pump(self, force=False):
        if self.stream is None: return
        self.inpump = True
        self.stream.pump(force)
        self.inpump = False

class DStream:
    def __init__(self, e, ring, n, voff, sbase, total, pace=68, dmin=14):
        self.e, self.ring, self.n, self.voff, self.sb, self.total = e, ring, n, voff, sbase, total
        self.pace, self.dmin = pace, dmin
        self.li = self.ci = self.pos = 0; self.last = -10**9
        self.jumps = {}
    def slot(self, f): return self.ring(4 * (f % self.n), 4)
    def load(self):
        f = self.li
        if f >= self.total or f - self.ci >= self.n: return False
        self.li += 1
        self.e(f"global_load_dwordx4 {self.slot(f)}, {self.voff}, s[{self.sb}:{self.sb+1}] offset:{(f % 8) * 1024 - 4096}", ("w", f))
        if f % 8 == 7: self.e(f"v_add_u32 {self.voff}, 8192, {self.voff}")
        if f + 1 in self.jumps: self.e(f"v_add_u32 {self.voff}, {self.jumps[f+1]}, {self.voff}")
        self.last = max(self.last + self.pace, self.e.t - 60)
        return True
    def pump(self, force=False):
        if force or self.e.t - self.last >= self.pace or self.li - max(self.ci, self.pos) < self.dmin:
            self.load()
    def acquire(self, f, group=4):
        while f >= self.li: assert self.load(), "stream starved"
        tgt = min(f - f % group + group - 1, self.li - 1)
        if ("w", f) in self.e.vm.q: self.e.wait(vm=("w", tgt))
        self.pos = f + 1
        return self.slot(f)
    def release(self, n=1): self.ci += n
    def take(self, group=4):
        r = self.acquire(self.ci, group); self.release(); return r
    def rel(self, x): return (x[0], x[1] - self.ci) if isinstance(x, tuple) else x
    def state(self):
        return (self.li - self.ci, self.ci % self.n, tuple(self.rel(x) for x in self.e.vm.q), tuple(self.rel(x) for x in self.e.lg.q))
    def skip(self, k):
        sh = lambda x: (x[0], x[1] + k) if isinstance(x, tuple) else x
        self.li += k; self.ci += k
        self.e.vm.q = [sh(x) for x in self.e.vm.q]; self.e.lg.q = [sh(x) for x in self.e.lg.q]

class TStream:
    NG = 5
    LAT = 600
    def __init__(self, e, ring, nr, voff, sb, sring, vt, segs, pace=272):
        self.e, self.ring, self.nr, self.voff, self.sb, self.sring, self.vt = e, ring, nr, voff, sb, sring, vt
        self.segs = segs; self.pace = pace
        self.total = sum(s["n"] for s in segs)
        self.d = 0
        self.r = 0
        self.ci = 0
        self.rdone = 0
        self.pos = 0
        self.arr = {}; self.rt = {}
        self.wide = None
        self.block_until = 0
        self.ahead = False
        self.block = "-"
        self.last = -10**9
    def seg(self, g):
        for s in self.segs:
            if g < s["n"]: return s, g
            g -= s["n"]
    def sreg(self, f):
        if self.wide is not None and f >= self.wide[0]:
            k = f - self.wide[0]; x = self.wide[2]; n = 4 * self.nr + x; i = k % n
            prev = f - n if k >= n else (-1 if i < x else f - x - 4 * self.nr)
            return (self.wide[1].at(4 * i) if i < x else self.ring.at(4 * (i - x))), prev
        return self.ring.at(4 * (f % (4 * self.nr))), f - 4 * self.nr
    def slot(self, f): return self.sreg(f)[0](0, 4)
    def dma(self, lazy=False):
        g, i = divmod(self.d, 4)
        if g >= self.total: return False
        if g - self.NG >= self.rdone:
            if 8 * (g - self.NG + 1) > self.r: return False
            if lazy and self.e.t < self.rt.get(g - self.NG, 0) + 64: return False
            self.e.wait(lg=("r", 4 * (g - self.NG) + 3)); self.rdone = g - self.NG + 1
        e = self.e
        if i == 0:
            s, k = self.seg(g)
            e(f"s_add_u32 m0, s{self.sring}, {(g % self.NG) * 4096}")
            if k == 0: e.ext(s["setup"])
            else:
                step = s["stepf"](k) if "stepf" in s else s["step"] + (s["jump"][1] if "jump" in s and k % s["jump"][0] == 0 else 0)
                if step >= 0:
                    e(f"s_add_u32 s{self.sb}, s{self.sb}, {step}"); e(f"s_addc_u32 s{self.sb+1}, s{self.sb+1}, 0")
                else:
                    e(f"s_sub_u32 s{self.sb}, s{self.sb}, {-step}"); e(f"s_subb_u32 s{self.sb+1}, s{self.sb+1}, 0")
        e(f"global_load_lds_dwordx4 {self.voff(i)}, s[{self.sb}:{self.sb+1}] offset:{1024*i}", ("d", 4 * g))
        self.d += 1
        self.last = max(self.last + self.pace // 4, e.t - 60)
        if i == 3:
            self.arr[g] = max(e.t + self.LAT, self.arr.get(g - 1, -10**9) + self.pace)
        return True
    def tr(self, lazy=False):
        g, j = divmod(self.r, 8)
        if g >= self.total or 4 * (g + 1) > self.d: return False
        sl, t, u = j >> 2, (j >> 1) & 1, j & 1
        f = 4 * g + 2 * sl + t
        reg, prev = self.sreg(f)
        if prev >= self.ci: return False
        if j == 0:
            if lazy and self.e.t < self.arr[g]: return False
            q = self.e.vm.q
            if lazy and self.e.t < self.block_until and self.block in q and ("d", 4 * g) in q and q.index(self.block) < len(q) - 1 - q[::-1].index(("d", 4 * g)):
                return False
            self.e.wait(vm=("d", 4 * g))
            self.e.t = max(self.e.t, self.arr[g])
        self.e(f"ds_read_b64_tr_b16 {reg(2 * u, 2)}, {self.vt(t)} offset:{(g % self.NG) * 4096 + sl * 2048 + u * 1024}", ("r", f))
        self.r += 1
        if j == 7: self.rt[g] = self.e.t
        return True
    def step(self):
        self.dma(); self.tr(); self.tr()
    def pump(self, force=False):
        pos = max(self.ci, self.pos)
        near = self.r // 2 - pos < 6
        self.tr(lazy=not near); self.tr(lazy=not near)
        if force or (self.ahead and self.e.t - self.last >= self.pace // 4) or self.d - pos < 4 * self.NG:
            self.dma(lazy=self.d - pos >= 12)
    def fill(self, ngroups):
        for _ in range(ngroups):
            for _ in range(8): self.tr()
            for _ in range(4): self.dma()
    def slow_op(self, tag, lat):
        self.block = tag; self.block_until = self.e.t + lat
    def acquire(self, f):
        while self.r < 8 * (f // 4) + 2 * (f % 4) + 2:
            if not self.tr(): assert self.dma(), "stream starved"
        if ("r", f) in self.e.lg.q:
            tgt = f
            while tgt % 4 != 3 and ("r", tgt + 1) in self.e.lg.q and self.r >= 2 * (tgt + 2) + 4: tgt += 1
            self.e.wait(lg=("r", tgt))
            if tgt % 4 == 3: self.rdone = max(self.rdone, tgt // 4 + 1)
        if f % 4 == 3: self.rdone = max(self.rdone, f // 4 + 1)
        self.pos = f + 1
        return self.slot(f)
    def release(self, n=1): self.ci += n
    def take(self):
        r = self.acquire(self.ci); self.release(); return r
    def rel(self, x): return (x[0], x[1] - self.ci) if isinstance(x, tuple) else x
    def state(self):
        return (self.d - self.ci, self.r - 2 * self.ci, self.rdone * 4 - self.ci, self.ci % (4 * self.nr),
                tuple(self.rel(x) for x in self.e.vm.q), tuple(self.rel(x) for x in self.e.lg.q))
    def skip(self, k):
        sh = lambda x: (x[0], x[1] + k) if isinstance(x, tuple) else x
        self.d += k; self.r += 2 * k; self.ci += k; self.rdone += k // 4
        self.e.vm.q = [sh(x) for x in self.e.vm.q]; self.e.lg.q = [sh(x) for x in self.e.lg.q]
```

```python
import sys
from common import *
import ka2, attn, kc2 as kc
HDR = open("standalone__conformer_family_zipformer__speech.s.ref").read().split("; Override launch")[0]
def build(path, timing=False, **kw):
    a = Asm()
    a.lines += HDR.rstrip("\n").split("\n")
    a(f"; @launch kernel=ffa_kernel grid=(256,1,1) block=(256,1,1) lds={ka2.A_LDS}")
    a(f"; @launch kernel=attn_kernel grid=(256,1,1) block=(256,1,1) lds={attn.B_LDS}")
    a(f"; @launch kernel=post_kernel grid=(256,1,1) block=(256,1,1) lds={kc.C_LDS}")
    a('.amdgcn_target "amdgcn-amd-amdhsa--gfx950"')
    ka2.gen_a(a, "ffa_kernel", timing=timing, code_kb=32)
    attn.gen_attn(a, "attn_kernel", timing=timing)
    kc.gen_c(a, "post_kernel", timing=timing)
    open(path, "w").write(a.text())
if __name__ == "__main__" and len(sys.argv) > 1:
    build(sys.argv[1])
elif __name__ == "__main__":
    build("standalone__conformer_family_zipformer__speech.s")
    build("full_t.s", timing=True)
    import ka
    ka.HARNESS_DBG = True
    build("full_h.s", timing=True)
```

```python
import sys
from common import *
import ka2, attn, kc2 as kc
HDR = open("standalone__conformer_family_zipformer__speech.s.ref").read().split("; Override launch")[0]
def build(path, timing=False, **kw):
    a = Asm()
    a.lines += HDR.rstrip("\n").split("\n")
    import os
    X = os.environ.get("EXTRA", "")
    if "first" in X: a("; @launch kernel=nop_kernel grid=(1,1,1) block=(64,1,1) lds=0")
    a(f"; @launch kernel=ffa_kernel grid=(256,1,1) block=(256,1,1) lds={ka2.A_LDS}")
    a(f"; @launch kernel=attn_kernel grid=(256,1,1) block=(256,1,1) lds={attn.B_LDS}")
    a(f"; @launch kernel=post_kernel grid=(256,1,1) block=(256,1,1) lds={kc.C_LDS}")
    if "last" in X: a("; @launch kernel=nop_kernel grid=(1,1,1) block=(64,1,1) lds=0")
    a('.amdgcn_target "amdgcn-amd-amdhsa--gfx950"')
    if X:
        kernel_head(a, "nop_kernel"); a("s_endpgm"); kernel_desc(a, "nop_kernel", 8, 8, 16)
    ka2.gen_a(a, "ffa_kernel", timing=timing, code_kb=32)
    attn.gen_attn(a, "attn_kernel", timing=timing)
    kc.gen_c(a, "post_kernel", timing=timing)
    open(path, "w").write(a.text())
if __name__ == "__main__" and len(sys.argv) > 1:
    build(sys.argv[1])
elif __name__ == "__main__":
    build("standalone__conformer_family_zipformer__speech.s")
    build("full_t.s", timing=True)
    import ka
    ka.HARNESS_DBG = True
    build("full_h.s", timing=True)
```
